```python
import torch

def _softmax(x, axis=-1):
    return torch.softmax(x, dim=axis)

def _gelu(x):
    return torch.nn.functional.gelu(x, approximate='tanh')

def _silu(x):
    return torch.nn.functional.silu(x)

def _sigmoid(x):
    return torch.sigmoid(x)

def _layernorm(x, axis=-1, eps=1e-05):
    m = x.mean(dim=axis, keepdim=True)
    v = x.var(dim=axis, keepdim=True, unbiased=False)
    return (x - m) / torch.sqrt(v + eps)

def _scatter_add(tgt, idx, src, axis=0):
    return tgt.clone().index_add_(axis, idx, src)

def _segment_sum(src, seg, n):
    out = torch.zeros((n,) + src.shape[1:], dtype=src.dtype)
    return out.index_add_(0, seg, src)

def _pad(x, pw):
    flat = tuple((v for pair in reversed(pw) for v in pair))
    return torch.nn.functional.pad(x, flat)
kernel_name = 'standalone__factorization_afm__recsys'

def setup_inputs():

    _w = lambda a: (lambda t: t.to(torch.bfloat16) if t.is_floating_point() else t)(torch.as_tensor(a))
    B, F, D, V = (4096, 26, 128, min(1000, 100000))
    A = D
    ii, jj = tuple(torch.triu_indices(F, F, 1).unbind(0))
    return {'idx': _w((lambda lo, hi, *s: torch.randint(lo, hi, s))(0, V, B, F).to(torch.int64)), 'table': _w((lambda *s: torch.randn(*s, dtype=torch.bfloat16) * 0.2)(V, D)), 'ii': _w(ii.to(torch.int64)), 'jj': _w(jj.to(torch.int64)), 'W': _w((lambda *s: torch.randn(*s, dtype=torch.bfloat16) * 1.6)(D, A) * (1.0 / D ** 0.5)), 'b': _w((lambda *s: torch.randn(*s, dtype=torch.bfloat16) * 1.6)(A)), 'h': _w((lambda *s: torch.randn(*s, dtype=torch.bfloat16) * 1.6)(A)), 'p': _w((lambda *s: torch.randn(*s, dtype=torch.bfloat16) * 0.2)(D))}

def reference(idx, table, ii, jj, W, b, h, p):
    emb = table[idx]
    ei = emb[:, ii, :].clone()
    ej = emb[:, jj, :].clone()
    pair = ei * ej
    hid = pair @ W + b
    hid = 0.5 * (hid + torch.abs(hid))
    e = hid @ h
    alpha = _softmax(e, axis=-1)
    pooled = torch.einsum('bp,bpd->bd', alpha, pair)
    return pooled @ p
```

```python
import math
LOG2E = 1.4426950408889634
C_LIN = 0.5 * LOG2E

import struct
def f2u(x): return struct.unpack('<I', struct.pack('<f', x))[0]

T_BASE = 0
X_BASE = 131072
LS_BASE = X_BASE
R_BASE = X_BASE + 16384 + 256
MISC_BASE = X_BASE + 24576 + 256

class Em:
    def __init__(self): self.l = []
    def __call__(self, s): self.l.append('    ' + s)
    def lab(self, s): self.l.append(s + ':')
    def c(self, s): self.l.append('    ; ' + s)
    def txt(self): return '\n'.join(self.l) + '\n'

def vr(b, n=1): return f'v{b}' if n == 1 else f'v[{b}:{b+n-1}]'

A0 = 128; H0 = 96; BI0 = 64; BF0 = 32; D0 = 16; P0 = 8; BA0 = 4
def A(t, s): return vr(A0 + 16*t + 4*s, 4)
def BI(t): return vr(BI0 + 4*t, 4)
def BF(buf, s): return vr(BF0 + 16*buf + 4*s, 4)
def D(i): return vr(D0 + 4*i, 4)

def k1(name, stage=1, stamps=False, dbg=None):
    e = Em()
    N = name
    e.l.append(f'.p2align 8\n.type {name},@function\n{name}:')
    e('s_cmp_ge_u32 s2, 250')
    e(f's_cbranch_scc1 {N}_done')
    if stamps: e('s_memrealtime s[60:61]')
    e('s_load_dwordx2 s[4:5], s[0:1], 8')
    e('s_load_dwordx8 s[8:15], s[0:1], 32')
    e('s_load_dwordx2 s[6:7], s[0:1], 80')
    e('v_lshrrev_b32 v1, 6, v0')
    e('v_and_b32 v0, 63, v0')
    e('v_readfirstlane_b32 s3, v1')
    e('s_lshl_b32 s40, s2, 2')
    e('v_lshrrev_b32 v2, 4, v0')
    e('v_and_b32 v3, 15, v0')
    e('v_lshlrev_b32 v4, 1, v2')
    e('v_xor_b32 v4, v3, v4')
    e('v_lshlrev_b32 v4, 4, v4')
    e('v_lshl_add_u32 v4, v2, 8, v4')
    e('s_lshl_b32 s41, s3, 12')
    e('v_add_u32 v4, s41, v4')
    e('v_xor_b32 v5, 128, v4')
    e('s_and_b32 s42, s3, 3')
    e('s_lshl_b32 s42, s42, 2')
    e('v_add_u32 v6, s42, v2')
    e('v_xor_b32 v6, v3, v6')
    e('v_lshlrev_b32 v6, 4, v6')
    e('s_lshl_b32 s43, s3, 2')
    e('s_add_u32 s43, s43, s40')
    e('v_add_u32 v7, s43, v2')
    e('v_lshl_add_u32 v6, v7, 8, v6')
    e('s_waitcnt lgkmcnt(0)')
    e('s_mov_b32 s16, s4'); e('s_mov_b32 s17, s5'); e('s_mov_b32 s18, 256000'); e('s_mov_b32 s19, 0x00020000')
    e('s_mov_b32 s20, s8'); e('s_mov_b32 s21, s9'); e('s_mov_b32 s22, 32768'); e('s_mov_b32 s23, 0x00020000')
    e('s_mov_b32 s24, s10'); e('s_mov_b32 s25, s11'); e('s_mov_b32 s26, 256'); e('s_mov_b32 s27, 0x00020000')
    e('s_mov_b32 s28, s12'); e('s_mov_b32 s29, s13'); e('s_mov_b32 s30, 256'); e('s_mov_b32 s31, 0x00020000')
    e('s_mov_b32 s32, s14'); e('s_mov_b32 s33, s15'); e('s_mov_b32 s34, 256'); e('s_mov_b32 s35, 0x00020000')
    e('s_mov_b32 s36, s6'); e('s_mov_b32 s37, s7'); e('s_mov_b32 s38, 0x10000000'); e('s_mov_b32 s39, 0x00020000')
    e('s_cmp_ge_u32 s3, 4')
    e(f's_cbranch_scc1 {N}_hsmall')
    e('v_lshlrev_b32 v8, 3, v2')
    for t in range(8): e(f'buffer_load_dwordx2 {vr(32+2*t,2)}, v8, s[28:31], 0 offen offset:{32*t}')
    for t in range(8): e(f'buffer_load_dwordx2 {vr(48+2*t,2)}, v8, s[24:27], 0 offen offset:{32*t}')
    e(f's_branch {N}_dma')
    e.lab(f'{N}_hsmall')
    e('v_lshlrev_b32 v8, 4, v2')
    for k in range(4): e(f'buffer_load_dwordx4 {vr(32+4*k,4)}, v8, s[28:31], 0 offen offset:{64*k}')
    for k in range(4): e(f'buffer_load_dwordx4 {vr(48+4*k,4)}, v8, s[32:35], 0 offen offset:{64*k}')
    e('v_lshlrev_b32 v9, 2, v0')
    e('buffer_load_dword v64, v9, s[28:31], 0 offen')
    e('buffer_load_dword v65, v9, s[24:27], 0 offen')
    e.lab(f'{N}_dma')
    e(f's_lshl_b32 s44, s3, 12')
    e(f's_add_u32 s44, s44, {X_BASE}')
    for k in range(4):
        e(f's_add_u32 m0, s44, {1024*k}')
        src = 'v4' if k < 2 else 'v5'
        if k == 0:
            e('s_nop 0')
            e(f'buffer_load_dwordx4 {src}, s[20:23], 0 offen lds')
        if k > 0:
            e(f'v_add_u32 v9, {1024*k}, {src}')
            e(f'buffer_load_dwordx4 v9, s[20:23], 0 offen lds')
    e('s_lshl_b32 s44, s3, 10')
    e('s_mov_b32 s45, 256000')
    for k in range(16):
        if k > 0: e('v_add_u32 v6, 8192, v6')
        e('v_subrev_u32 v9, s45, v6')
        e(f's_add_u32 m0, s44, {8192*k}')
        e('v_min_u32 v9, v9, v6')
        e('buffer_load_dwordx4 v9, s[16:19], 0 offen lds')
    e('s_cmp_ge_u32 s3, 4')
    e(f's_cbranch_scc1 {N}_helper')

    e.c('compute wave')
    e('s_waitcnt vmcnt(20)')
    for t in range(8):
        for q in range(2):
            e(f'v_lshlrev_b32 v{H0+4*t+2*q}, 16, v{32+2*t+q}')
            e(f'v_and_b32 v{H0+4*t+2*q+1}, 0xffff0000, v{32+2*t+q}')
    for t in range(8):
        for q in range(2):
            e(f'v_lshlrev_b32 v{BI0+4*t+2*q}, 16, v{48+2*t+q}')
            e(f'v_and_b32 v{BI0+4*t+2*q+1}, 0xffff0000, v{48+2*t+q}')
    e('v_lshrrev_b32 v8, 2, v3')
    e('v_and_b32 v9, 3, v3')
    e('v_lshl_add_u32 v10, v2, 3, v8')
    e('v_lshlrev_b32 v10, 8, v10')
    e('v_lshl_add_u32 v10, v9, 3, v10')
    e('v_and_b32 v11, 1, v2')
    e('v_lshl_add_u32 v11, v11, 2, v8')
    e('v_lshl_add_u32 v10, v11, 5, v10')
    e(f'v_add_u32 v4, {X_BASE}, v10')
    for t in range(1, 8): e(f'v_xor_b32 v{4+t}, {32*t}, v4')
    e('v_xor_b32 v12, s3, v2')
    e('v_lshlrev_b32 v12, 4, v12')
    e('s_lshl_b32 s46, s3, 8')
    e('v_add_u32 v12, s46, v12')
    e('v_and_b32 v13, 1, v0')
    e('v_lshlrev_b32 v13, 4, v13')
    e('v_mov_b32 v14, 0xffff')
    e('v_lshlrev_b32 v13, v13, v14')
    e('v_and_b32 v14, 2, v0')
    e('v_cmp_eq_u32 vcc, 0, v14')
    e('v_mov_b32 v15, 0')
    e('s_nop 0')
    e('v_cndmask_b32 v14, v15, v13, vcc')
    e('v_cndmask_b32 v13, v13, v15, vcc')
    e('s_waitcnt vmcnt(15)')
    e('s_barrier')
    if stamps: e('s_memrealtime s[62:63]')
    for s in range(4):
        if s == 0: e(f'ds_read_b128 {vr(32,4)}, v12')
        else:
            e(f'v_xor_b32 v15, {64*s}, v12')
            e(f'ds_read_b128 {vr(32+4*s,4)}, v15')
    def trread(k):
        t, s, q = k >> 3, (k >> 1) & 3, k & 1
        e(f'ds_read_b64_tr_b16 {vr(48 + 2*(k % 8), 2)}, v{4+t} offset:{8192*s + 1024*q}')
    for k in range(4): trread(k)
    e('s_waitcnt lgkmcnt(4)')
    for s in range(4):
        for q in range(2):
            e(f'v_and_b32 v{32+4*s+2*q}, v{32+4*s+2*q}, v14')
            e(f'v_and_b32 v{32+4*s+2*q+1}, v{32+4*s+2*q+1}, v13')
    for k in range(4, 8): trread(k)
    def cvts(k):
        t, s, q = k >> 3, (k >> 1) & 3, k & 1
        d = 16 + 4*(k % 4)
        a = A0 + 16*t + 4*s + 2*q
        e(f'v_cvt_pk_bf16_f32 v{a}, v{d}, v{d+1}')
        e(f'v_cvt_pk_bf16_f32 v{a+1}, v{d+2}, v{d+3}')
    for k in range(64):
        t, s, q = k >> 3, (k >> 1) & 3, k & 1
        if k % 4 == 0:
            rem = min(64 - k, 8) - 4
            e(f's_waitcnt lgkmcnt({rem})')
        if k >= 3: pass
        e(f'v_mfma_f32_4x4x4_16b_bf16 {vr(16 + 4*(k % 4), 4)}, {vr(32+4*s+2*q, 2)}, {vr(48 + 2*(k % 8), 2)}, 0')
        if k == 3: e('s_nop 1')
        if k >= 3: cvts(k - 3)
        if k % 4 == 3:
            for kk in range(k + 5, min(k + 9, 64)): trread(kk)
    e('s_nop 2')
    cvts(61); cvts(62); e('s_nop 0'); cvts(63)
    e('v_xor_b32 v4, v2, v3')
    e('v_lshlrev_b32 v4, 4, v4')
    e('v_lshl_add_u32 v4, v3, 8, v4')
    for s in range(1, 4): e(f'v_xor_b32 v{BA0+s}, {64*s}, v4')
    e('s_lshl_b32 s46, s3, 11')
    e(f's_add_u32 s46, s46, {R_BASE - 256}')
    e('v_lshlrev_b32 v1, 2, v0')
    e('v_add_u32 v1, s46, v1')
    e('s_waitcnt vmcnt(0)')
    e('s_barrier')
    if stamps: e('s_memrealtime s[64:65]')
    for s in range(4): e(f'ds_read_b128 {BF(0,s)}, v{BA0+s}')
    e('s_mov_b32 s47, 0')
    e.lab(f'{N}_loop')
    def fma(C, r):
        Cm = C % 32
        j, t = Cm >> 3, Cm & 7
        d = D0 + 4*(Cm % 4) + r
        if t == 0 and r == 0: e(f'v_mul_f32 v{P0+j}, |v{d}|, v{H0+4*t+r}')
        else: e(f'v_fma_f32 v{P0+j}, |v{d}|, v{H0+4*t+r}, v{P0+j}')
    for m in range(128):
        j, t, s = m >> 5, (m >> 2) & 7, m & 3
        C = m >> 2
        if m % 32 == 0: e('s_waitcnt lgkmcnt(0)')
        c_in = BI(t) if s == 0 else D(C % 4)
        e(f'v_mfma_f32_16x16x32_bf16 {D(C % 4)}, {A(t,s)}, {BF(j & 1, s)}, {c_in}')
        fma(C - 2, s)
        mt = m & 31
        if mt in (1, 5, 9, 13):
            sn = mt >> 2
            e(f'ds_read_b128 {BF((j+1) & 1, sn)}, v{BA0+sn} offset:{4096*(j+1)}')
        if m == 9:
            e(f'v_permlane16_swap_b32 v{P0+2}, v{P0+3}')
        if m == 10: e(f'v_add_f32 v{P0+2}, v{P0+2}, v{P0+3}')
        if m == 12: e(f'v_permlane32_swap_b32 v2, v{P0+2}')
        if m == 13: e(f'v_add_f32 v2, v2, v{P0+2}')
        if m == 14: e('ds_write_b32 v1, v2')
        if m == 15: e('v_add_u32 v1, 256, v1')
        if m == 73: e(f'v_permlane16_swap_b32 v{P0}, v{P0+1}')
        if m == 74: e(f'v_add_f32 v2, v{P0}, v{P0+1}')
        if m >= 112 + 1 and m < 112 + 1 + 4:
            e(f'v_add_u32 v{BA0 + m - 113}, 16384, v{BA0 + m - 113}')
    e('s_add_u32 s47, s47, 1')
    e('s_cmp_lt_u32 s47, 8')
    e(f's_cbranch_scc1 {N}_loop')
    e('s_nop 7')
    for C in (30, 31):
        for r in range(4): fma(C, r)
    e('s_nop 1')
    e(f'v_permlane16_swap_b32 v{P0+2}, v{P0+3}')
    e(f'v_add_f32 v{P0+2}, v{P0+2}, v{P0+3}')
    e('s_nop 1')
    e(f'v_permlane32_swap_b32 v2, v{P0+2}')
    e(f'v_add_f32 v2, v2, v{P0+2}')
    e('ds_write_b32 v1, v2')
    e(f's_branch {N}_fin')

    e.lab(f'{N}_helper')
    e.c('helper wave; hw = wave-4')
    e('s_waitcnt vmcnt(20)')
    e('v_lshlrev_b32 v66, 16, v64'); e('v_and_b32 v67, 0xffff0000, v64')
    e('v_lshlrev_b32 v68, 16, v65'); e('v_and_b32 v69, 0xffff0000, v65')
    e('v_mul_f32 v66, v66, |v68|')
    e('v_fma_f32 v66, v67, |v69|, v66')
    for mode in ['row_ror:8 row_mask:0xf', 'row_ror:4 row_mask:0xf', 'row_ror:2 row_mask:0xf', 'row_ror:1 row_mask:0xf', 'row_bcast:15 row_mask:0xa', 'row_bcast:31 row_mask:0xc']:
        e('s_nop 1'); e(f'v_add_f32_dpp v66, v66, v66 {mode} bank_mask:0xf')
    e('s_nop 1')
    e('v_readlane_b32 s48, v66, 63')
    e(f's_mov_b32 s49, {f2u(-C_LIN):#x}')
    e('s_nop 1')
    e('v_mov_b32 v70, s49')
    e('v_mul_f32 v100, s48, v70')
    e('v_mov_b32 v101, 0'); e('v_mov_b32 v102, 0'); e('v_mov_b32 v103, 0')
    e('v_lshrrev_b32 v8, 2, v3')
    e('v_and_b32 v9, 3, v3')
    e('v_lshl_add_u32 v8, v8, 3, v9')
    e('v_and_b32 v9, 7, v3')
    e('v_lshlrev_b32 v9, 1, v9')
    e('v_xor_b32 v9, v9, v2')
    e('v_lshlrev_b32 v9, 4, v9')
    e('v_lshl_add_u32 v8, v8, 8, v9')
    e(f'v_add_u32 v4, {X_BASE}, v8')
    for k in range(1, 4): e(f'v_xor_b32 v{4+k}, {64*k}, v4')
    e('v_lshrrev_b32 v8, 2, v3')
    e('v_xor_b32 v9, v8, v2')
    e('v_lshlrev_b32 v9, 4, v9')
    e('v_lshl_add_u32 v12, v8, 8, v9')
    e('v_and_b32 v8, 3, v3')
    e(f'v_mov_b32 v9, {f2u(C_LIN):#x}')
    e('v_mov_b32 v10, 0')
    e('v_cmp_eq_u32 vcc, 0, v8')
    e('s_nop 1')
    e('v_cndmask_b32 v13, v10, v9, vcc')
    e('v_mov_b32 v9, -1')
    e('v_cmp_eq_u32 vcc, 1, v8')
    e('s_nop 1')
    e('v_cndmask_b32 v14, v10, v9, vcc')
    for i in range(16): e(f'v_and_b32 v{48+i}, v{48+i}, v14')
    e('s_waitcnt vmcnt(15)')
    e('s_barrier')
    for s in range(4):
        if s == 0: e(f'ds_read_b128 {vr(104,4)}, v12')
        else:
            e(f'v_xor_b32 v15, {64*s}, v12')
            e(f'ds_read_b128 {vr(104+4*s,4)}, v15')
    for sp in range(2):
        for s in (2*sp, 2*sp+1):
            for half in range(2):
                for k in range(4):
                    e(f'ds_read_b128 {vr(160 + 32*(s&1) + 16*half + 4*k, 4)}, v{4+k} offset:{8192*s + 1024*half}')
        e('s_waitcnt lgkmcnt(0)')
        for s in (2*sp, 2*sp+1):
            for half in range(2):
                dd = vr(128 + 8*s + 4*half, 4)
                for k in range(4):
                    cin = '0' if k == 0 else dd
                    e(f'v_mfma_f32_16x16x32_bf16 {dd}, {vr(160 + 32*(s&1) + 16*half + 4*k, 4)}, {vr(32+4*k,4)}, {cin}')
    e('s_nop 7')
    for s in range(4):
        for jj in range(0, 8, 2):
            g0 = 128 + 8*s + jj
            pp = 48 + 4*s + jj//2
            tt = 104 + 4*s + jj//2
            e(f'v_lshlrev_b32 v16, 16, v{pp}'); e(f'v_and_b32 v17, 0xffff0000, v{pp}')
            e(f'v_fma_f32 v16, v{g0}, v13, v16'); e(f'v_fma_f32 v17, v{g0+1}, v13, v17')
            e(f'v_lshlrev_b32 v18, 16, v{tt}'); e(f'v_and_b32 v19, 0xffff0000, v{tt}')
            e('v_mul_f32 v16, v16, v18'); e('v_mul_f32 v17, v17, v19')
            e(f'v_cvt_pk_bf16_f32 v{72 + 4*s + jj//2}, v16, v17')
    e('v_xor_b32 v4, v2, v3')
    e('v_lshlrev_b32 v4, 4, v4')
    e('v_lshl_add_u32 v4, v3, 8, v4')
    e('s_sub_u32 s50, s3, 4')
    e('s_lshl_b32 s51, s50, 12')
    e('v_add_u32 v4, s51, v4')
    for s in range(1, 4): e(f'v_xor_b32 v{4+s}, {64*s}, v4')
    e('v_lshlrev_b32 v8, 12, v2')
    e('v_lshl_add_u32 v8, v3, 3, v8')
    e('s_lshl_b32 s51, s50, 7')
    e(f's_add_u32 s51, s51, {LS_BASE}')
    e('v_add_u32 v8, s51, v8')
    e('s_waitcnt vmcnt(0)')
    e('s_barrier')
    for i in range(8):
        off = 16384 * i
        if i == 4:
            for s in range(4): e(f'v_add_u32 v{4+s}, 65536, v{4+s}')
        buf = 128 + 16*(i & 1)
        for s in range(4): e(f'ds_read_b128 {vr(buf+4*s,4)}, v{4+s} offset:{off % 65536}')
        e('s_waitcnt lgkmcnt(0)')
        dd = vr(160 + 4*(i & 1), 4)
        for s in range(4):
            cin = vr(100,4) if s == 0 else dd
            e(f'v_mfma_f32_16x16x32_bf16 {dd}, {vr(72+4*s,4)}, {vr(buf+4*s,4)}, {cin}')
        e('s_nop 7')
        e(f'ds_write_b64 v8, {vr(160 + 4*(i & 1), 2)} offset:{512*i}')
    e.lab(f'{N}_fin')
    e('s_waitcnt lgkmcnt(0)')
    e('s_barrier')
    if stamps: e('s_memrealtime s[66:67]')
    e('s_lshl_b32 s46, s3, 6')
    e('v_add_u32 v1, s46, v0')
    e('v_lshlrev_b32 v2, 4, v1')
    e(f'v_add_u32 v3, {R_BASE}, v2')
    e('v_lshlrev_b32 v4, 5, v1')
    e(f'v_add_u32 v4, {LS_BASE}, v4')
    e('ds_read_b128 v[8:11], v3')
    e('ds_read_b128 v[12:15], v4')
    e('ds_read_b128 v[16:19], v4 offset:16')
    e(f's_mov_b32 s46, {f2u(C_LIN):#x}')
    e('s_waitcnt lgkmcnt(0)')
    e('v_fma_f32 v8, v8, s46, v12'); e('v_fma_f32 v9, v9, s46, v14')
    e('v_fma_f32 v10, v10, s46, v16'); e('v_fma_f32 v11, v11, s46, v18')
    e('v_cvt_pk_bf16_f32 v8, v8, v13'); e('v_cvt_pk_bf16_f32 v9, v9, v15')
    e('v_cvt_pk_bf16_f32 v10, v10, v17'); e('v_cvt_pk_bf16_f32 v11, v11, v19')
    e('s_lshl_b32 s46, s40, 11')
    e('v_add_u32 v2, s46, v2')
    e('buffer_store_dwordx4 v[8:11], v2, s[36:39], 0 offen')
    if stamps:
        e('s_waitcnt vmcnt(0)')
        e('s_memrealtime s[68:69]')
        e('s_waitcnt lgkmcnt(0)')
        e('v_mov_b32 v8, s60'); e('v_mov_b32 v9, s62'); e('v_mov_b32 v10, s64'); e('v_mov_b32 v11, s66')
        e('v_mov_b32 v12, s68'); e('v_mov_b32 v13, 0'); e('v_mov_b32 v14, 0'); e('v_mov_b32 v15, 0')
        e('s_lshl_b32 s46, s2, 3'); e('s_add_u32 s46, s46, s3'); e('s_lshl_b32 s46, s46, 5'); e('s_add_u32 s46, s46, 0x900000')
        e('v_mov_b32 v2, s46')
        e('v_cmp_eq_u32 vcc, 0, v0')
        e('s_and_saveexec_b64 s[50:51], vcc')
        e(f's_cbranch_execz {N}_done')
        e('buffer_store_dwordx4 v[8:11], v2, s[36:39], 0 offen')
        e('buffer_store_dwordx4 v[12:15], v2, s[36:39], 0 offen offset:16')
    e.lab(f'{N}_done')
    e('s_endpgm')
    return e.txt()
```

```python
def k2(name, stamps=False, flags='', wpb=4):
    s = f'''
.p2align 8
.type {name},@function
{name}:
    s_cmp_ge_u32 s2, {4096//wpb}
    s_cbranch_scc1 {name}_done
'''
    if stamps: s += '    s_memrealtime s[40:41]\n'
    s += f'''
    s_load_dwordx2 s[4:5], s[0:1], 0        ; idx
    s_load_dwordx4 s[8:11], s[0:1], 16
    s_load_dwordx2 s[12:13], s[0:1], 64     ; out
    s_load_dwordx2 s[14:15], s[0:1], 80     ; ws
    v_lshrrev_b32 v1, 6, v0
    v_and_b32 v0, 63, v0
    v_readfirstlane_b32 s3, v1
    v_lshlrev_b32 v2, 2, v0                 ; lane*4
    s_mul_i32 s33, s2, {wpb}
    s_add_u32 s33, s33, s3                  ; b
    s_mul_i32 s34, s33, 104                 ; b*26*4
    s_waitcnt lgkmcnt(0)
    ; SRDs
    s_mov_b32 s16, s4
    s_mov_b32 s17, s5
    s_mov_b32 s18, {4096*26*4}
    s_mov_b32 s19, 0x00020000
    s_mov_b32 s20, s8
    s_mov_b32 s21, s9
    s_mov_b32 s22, 1300
    s_mov_b32 s23, 0x00020000
    s_mov_b32 s24, s10
    s_mov_b32 s25, s11
    s_mov_b32 s26, 1300
    s_mov_b32 s27, 0x00020000
    s_mov_b32 s28, s14
    s_mov_b32 s29, s15
    s_mov_b32 s30, {1000*512*4}
    s_mov_b32 s31, 0x00020000
    buffer_load_dword v3, v2, s[16:19], s34 offen
'''
    for k in range(6):
        s += f'    buffer_load_dword v{4+k}, v2, s[20:23], 0 offen offset:{256*k}\n'
        s += f'    buffer_load_dword v{10+k}, v2, s[24:27], 0 offen offset:{256*k}\n'
    s += '    s_movk_i32 s35, 1000\n    s_movk_i32 s36, 512\n'
    s += '    s_waitcnt vmcnt(0)\n'
    if stamps: s += '    s_memrealtime s[42:43]\n'
    for k in range(6):
        s += f'    v_lshlrev_b32 v{4+k}, 2, v{4+k}\n    v_lshlrev_b32 v{10+k}, 2, v{10+k}\n'
    for k in range(6):
        s += f'    ds_bpermute_b32 v{4+k}, v{4+k}, v3\n    ds_bpermute_b32 v{10+k}, v{10+k}, v3\n'
    for k in range(6):
        x, y = 4+k, 10+k
        s += f'    s_waitcnt lgkmcnt({10-2*k})\n'
        s += f'''    v_and_b32 v16, -4, v{x}
    v_and_b32 v17, -4, v{y}
    v_sub_u32 v16, v{y}, v16
    v_sub_u32 v17, v{x}, v17
    v_add_u32 v18, s35, v16
    v_add_u32 v19, s35, v17
    v_min_u32 v16, v16, v18
    v_min_u32 v17, v17, v19
    v_cmp_gt_u32 vcc, s36, v16
    v_lshl_add_u32 v16, v{x}, 9, v16
    v_lshl_add_u32 v17, v{y}, 9, v17
    v_cndmask_b32 v16, v17, v16, vcc
    v_lshlrev_b32 v{20+k}, 2, v16
'''
        if k == 5:
            s += '    v_cmp_gt_u32 vcc, 5, v0\n    s_nop 1\n    s_and_saveexec_b64 s[38:39], vcc\n'
        s += f'    buffer_load_dword v{26+k}, v{20+k}, s[28:31], 0 offen {flags}\n'
        if k == 5:
            s += '    s_mov_b64 exec, s[38:39]\n'
    s += '    v_mov_b32 v16, 0xff80\n'
    s += '    s_waitcnt vmcnt(0)\n'
    if stamps: s += '    s_memrealtime s[44:45]\n'
    s += '    v_cndmask_b32 v31, v16, v31, vcc\n'
    for k in range(6):
        s += f'    v_lshlrev_b32 v{4+k}, 16, v{26+k}\n    v_and_b32 v{10+k}, 0xffff0000, v{26+k}\n'
    s += '''    v_max3_f32 v16, v4, v5, v6
    v_max3_f32 v17, v7, v8, v9
    v_max_f32 v16, v16, v17
    s_nop 1
    v_max_f32_dpp v16, v16, v16 row_ror:8 row_mask:0xf bank_mask:0xf
    s_nop 1
    v_max_f32_dpp v16, v16, v16 row_ror:4 row_mask:0xf bank_mask:0xf
    s_nop 1
    v_max_f32_dpp v16, v16, v16 row_ror:2 row_mask:0xf bank_mask:0xf
    s_nop 1
    v_max_f32_dpp v16, v16, v16 row_ror:1 row_mask:0xf bank_mask:0xf
    s_nop 1
    v_max_f32_dpp v16, v16, v16 row_bcast:15 row_mask:0xa bank_mask:0xf
    s_nop 1
    v_max_f32_dpp v16, v16, v16 row_bcast:31 row_mask:0xc bank_mask:0xf
    s_nop 1
    v_readlane_b32 s37, v16, 63
    s_nop 1
'''
    for k in range(6):
        s += f'    v_subrev_f32 v{4+k}, s37, v{4+k}\n'
    for k in range(6):
        s += f'    v_exp_f32 v{4+k}, v{4+k}\n'
    s += '''    s_nop 0
    v_add_f32 v16, v4, v5
    v_mul_f32 v17, v4, v10
    v_add_f32 v16, v16, v6
    v_fmac_f32 v17, v5, v11
    v_add_f32 v16, v16, v7
    v_fmac_f32 v17, v6, v12
    v_add_f32 v16, v16, v8
    v_fmac_f32 v17, v7, v13
    v_add_f32 v16, v16, v9
    v_fmac_f32 v17, v8, v14
    v_fmac_f32 v17, v9, v15
'''
    for mode in ['row_ror:8 row_mask:0xf', 'row_ror:4 row_mask:0xf', 'row_ror:2 row_mask:0xf', 'row_ror:1 row_mask:0xf', 'row_bcast:15 row_mask:0xa', 'row_bcast:31 row_mask:0xc']:
        s += f'    s_nop 0\n    v_add_f32_dpp v16, v16, v16 {mode} bank_mask:0xf\n    v_add_f32_dpp v17, v17, v17 {mode} bank_mask:0xf\n'
    s += f'''    s_nop 0
    v_rcp_f32 v16, v16
    s_nop 0
    v_mul_f32 v17, v17, v16
    v_cvt_pk_bf16_f32 v17, v17, v17
    s_lshl_b32 s34, s33, 1
    v_mov_b32 v18, s34
    s_mov_b32 s16, s12
    s_mov_b32 s17, s13
    s_mov_b32 s18, 8192
    v_cmp_eq_u32 vcc, 63, v0
    s_and_saveexec_b64 s[38:39], vcc
    s_cbranch_execz {name}_skip
    buffer_store_short v17, v18, s[16:19], 0 offen
'''
    if stamps:
        s += f'''    s_memrealtime s[46:47]
    s_waitcnt lgkmcnt(0)
    v_mov_b32 v4, s40
    v_mov_b32 v5, s42
    v_mov_b32 v6, s44
    v_mov_b32 v7, s46
    s_lshl_b32 s34, s33, 4
    s_add_u32 s34, s34, 0x800000
    v_mov_b32 v18, s34
    s_mov_b32 s30, 0x10000000
    buffer_store_dwordx4 v[4:7], v18, s[28:31], 0 offen
'''
    s += f'''{name}_skip:
{name}_done:
    s_endpgm
'''
    return s

def kd(name, vgpr, sgpr, acc=None):
    acc = acc if acc else ((vgpr + 3)//4)*4
    return f'''.amdhsa_kernel {name}
  .amdhsa_next_free_vgpr {vgpr}
  .amdhsa_next_free_sgpr {sgpr}
  .amdhsa_accum_offset {acc}
  .amdhsa_group_segment_fixed_size 0
  .amdhsa_kernarg_size 88
  .amdhsa_user_sgpr_count 2
  .amdhsa_user_sgpr_kernarg_segment_ptr 1
  .amdhsa_system_sgpr_workgroup_id_x 1
.end_amdhsa_kernel
'''
```

```python
import sys
sys.path.insert(0, 'scratch'); sys.path.insert(0, 'gen')
from k1 import k1
from k2gen import k2, kd
stamps = '--stamps' in sys.argv
out = sys.argv[1]
s = '''; AFM: K1 builds the vocabulary pair table, K2 gathers + softmax
; @launch kernel=afm_tab_kernel grid=(250,1,1) block=(512,1,1) lds=163840
; @launch kernel=afm_out_kernel grid=(1024,1,1) block=(256,1,1) lds=0
.amdgcn_target "amdgcn-amd-amdhsa--gfx950"
.text
.globl afm_tab_kernel
.globl afm_out_kernel
'''
s += k1('afm_tab_kernel', stamps=stamps)
s += k2('afm_out_kernel', stamps=stamps)
s += '.section .rodata,"a"\n.p2align 6\n' + kd('afm_tab_kernel', 256, 72) + '.p2align 6\n' + kd('afm_out_kernel', 32, 48)
open(out, 'w').write(s)
```

```python
import struct
LOG2E = 1.4426950408889634
C_LIN = 0.5 * LOG2E
def f2u(x): return struct.unpack('<I', struct.pack('<f', x))[0]

SMALL = 129024
S_H, S_B, S_P = SMALL, SMALL + 256, SMALL + 512
FLAG_T, FLAG_A, CNT, DUMMY = SMALL + 768, SMALL + 784, SMALL + 800, SMALL + 832
X_BASE = 131072
LS_BASE = X_BASE
R_BASE = X_BASE + 16384 + 256
AFR = R_BASE + 8192
LIST = AFR + 4096
LCAP = 192
assert LIST + 4*4*LCAP <= 163840
PART_OFF = 0
NEG_BIG = f2u(-1e30)

class Em:
    def __init__(self): self.l = []
    def __call__(self, s): self.l.append('    ' + s)
    def lab(self, s): self.l.append(s + ':')
    def c(self, s): self.l.append('    ; ' + s)
    def txt(self): return '\n'.join(self.l) + '\n'
def vr(b, n=1): return f'v{b}' if n == 1 else f'v[{b}:{b+n-1}]'

A0 = 128; H0 = 96; BI0 = 64; BF0 = 32; D0 = 16; P0 = 8; BA0 = 4
def A(t, s): return vr(A0 + 16*t + 4*s, 4)
def BI(t): return vr(BI0 + 4*t, 4)
def BF(buf, s): return vr(BF0 + 16*buf + 4*s, 4)
def D(i): return vr(D0 + 4*i, 4)

STAMP0 = 84
class Stamps:
    def __init__(self, e, on): self.e = e; self.on = on; self.names = {}
    def __call__(self, name, idx):
        self.names[idx] = name
        if self.on: self.e(f's_memrealtime s[{STAMP0+2*idx}:{STAMP0+2*idx+1}]')

def prep(e, E, X, I, R, tmp, load_only=False, calc_only=False):
    t0, t1, t2, t3 = tmp, tmp+1, tmp+2, tmp+3
    if not calc_only:
        e(f'v_mul_hi_u32 v{t0}, v{E}, s41')
        e(f'v_lshlrev_b32 v{t2}, 2, v{E}')
        e(f'v_mul_u32_u24 v{t1}, 26, v{t0}')
        e(f'v_mul_u32_u24 v{t0}, 104, v{t0}')
        e(f'v_sub_u32 v{I}, v{E}, v{t1}')
        e(f'buffer_load_dword v{X}, v{t2}, s[56:59], 0 offen')
        for q in range(6): e(f'buffer_load_dwordx4 {vr(R+4*q,4)}, v{t0}, s[56:59], 0 offen offset:{16*q}')
        e(f'buffer_load_dwordx2 {vr(R+24,2)}, v{t0}, s[56:59], 0 offen offset:96')
    if load_only: return
    e(f'v_and_b32 v{t0}, 3, v{X}')
    e(f'v_mul_u32_u24 v{t0}, 2052, v{t0}')
    e(f'v_add_u32 v{t0}, {R_BASE}, v{t0}')
    e(f'v_mov_b32 v{t3}, {DUMMY}')
    for j in range(26):
        y = R + j
        sa = f's[{64 + 4*(j % 2)}:{65 + 4*(j % 2)}]'
        sb = f's[{66 + 4*(j % 2)}:{67 + 4*(j % 2)}]'
        e(f'v_cmp_le_u32 {sa}, {j}, v{I}')
        e(f'v_sub_u32 v{y}, v{y}, v{X}')
        e(f'v_add_u32 v{t1}, s42, v{y}')
        e(f'v_min_u32 v{y}, v{y}, v{t1}')
        e(f'v_subb_co_u32 v{t1}, vcc, v{y}, 0, {sa}')
        e(f'v_lshl_add_u32 v{y}, v{y}, 2, v{t0}')
        e(f'v_cmp_gt_u32 {sb}, s43, v{t1}')
        if j > 0:
            sbp = f's[{66 + 4*((j-1) % 2)}:{67 + 4*((j-1) % 2)}]'
            e(f'v_cndmask_b32 v{y-1}, v{t3}, v{y-1}, {sbp}')
    e('s_nop 1')
    e(f'v_cndmask_b32 v{R+25}, v{t3}, v{R+25}, s[{66 + 4*(25 % 2)}:{67 + 4*(25 % 2)}]')

def lookup_issue(e, R, lo, hi):
    for j in range(lo, hi): e(f'ds_read_b32 v{R+j}, v{R+j}')

def lookup_calc(e, R, Et, out):
    for j in range(26): e(f'v_lshlrev_b32 v{Et+j}, 16, v{R+j}')
    m = out
    e(f'v_max3_f32 v{m}, v{Et}, v{Et+1}, s45')
    for j in range(2, 26, 2): e(f'v_max3_f32 v{m}, v{m}, v{Et+j}, v{Et+j+1}')
    for j in range(26): e(f'v_sub_f32 v{Et+j}, v{Et+j}, v{m}')
    for j in range(26):
        e(f'v_exp_f32 v{Et+j}, v{Et+j}')
        e(f'v_and_b32 v{R+j}, 0xffff0000, v{R+j}')
    e(f'v_add_f32 v{out+1}, v{Et}, v{Et+1}')
    e(f'v_mul_f32 v{out+2}, v{Et}, v{R}')
    e(f'v_fmac_f32 v{out+2}, v{Et+1}, v{R+1}')
    for j in range(2, 26):
        e(f'v_add_f32 v{out+1}, v{out+1}, v{Et+j}')
        e(f'v_fmac_f32 v{out+2}, v{Et+j}, v{R+j}')
    e(f'v_mov_b32 v{out+3}, 0')

def k1(name, stamps=False):
    e = Em(); N = name; st = Stamps(e, stamps)
    e.l.append(f'.p2align 8\n.type {name},@function\n{name}:')
    e('s_cmp_ge_u32 s2, 250')
    e(f's_cbranch_scc1 {N}_done')
    st('start', 0)
    e('s_load_dwordx2 s[4:5], s[0:1], 8')
    e('s_load_dwordx8 s[8:15], s[0:1], 32')
    e('s_load_dwordx2 s[6:7], s[0:1], 80')
    e('s_load_dwordx2 s[52:53], s[0:1], 0')
    e('v_lshrrev_b32 v1, 6, v0')
    e('v_and_b32 v0, 63, v0')
    e('v_readfirstlane_b32 s3, v1')
    e('s_lshl_b32 s40, s2, 2')
    e('v_lshrrev_b32 v2, 4, v0')
    e('v_and_b32 v3, 15, v0')
    e('v_lshlrev_b32 v4, 1, v2')
    e('v_xor_b32 v4, v3, v4')
    e('v_lshlrev_b32 v4, 4, v4')
    e('v_lshl_add_u32 v4, v2, 8, v4')
    e('s_lshl_b32 s41, s3, 12')
    e('v_add_u32 v4, s41, v4')
    e('v_xor_b32 v5, 128, v4')
    e('v_add_u32 v6, 1024, v4')
    e('v_add_u32 v7, 2048, v5')
    e('v_add_u32 v8, 3072, v5')
    e(f's_add_u32 s44, s41, {X_BASE}')
    e('s_waitcnt lgkmcnt(0)')
    e('s_mov_b32 s20, s8'); e('s_mov_b32 s21, s9'); e('s_mov_b32 s22, 32768'); e('s_mov_b32 s23, 0x00020000')
    e('s_cmp_lg_u32 s3, 4')
    e(f's_cbranch_scc1 {N}_nosmall')
    e('s_mov_b32 s24, s10'); e('s_mov_b32 s25, s11'); e('s_mov_b32 s26, 256'); e('s_mov_b32 s27, 0x00020000')
    e('s_mov_b32 s28, s12'); e('s_mov_b32 s29, s13'); e('s_mov_b32 s30, 256'); e('s_mov_b32 s31, 0x00020000')
    e('s_mov_b32 s32, s14'); e('s_mov_b32 s33, s15'); e('s_mov_b32 s34, 256'); e('s_mov_b32 s35, 0x00020000')
    e('v_lshlrev_b32 v9, 4, v0')
    e('s_mov_b64 exec, 0xffff')
    e(f's_mov_b32 m0, {S_H}'); e('s_nop 0')
    e('buffer_load_dwordx4 v9, s[28:31], 0 offen lds')
    e(f's_mov_b32 m0, {S_B}'); e('s_nop 0')
    e('buffer_load_dwordx4 v9, s[24:27], 0 offen lds')
    e(f's_mov_b32 m0, {S_P}'); e('s_nop 0')
    e('buffer_load_dwordx4 v9, s[32:35], 0 offen lds')
    e('s_mov_b64 exec, -1')
    e.lab(f'{N}_nosmall')
    for k, src in enumerate(['v4', 'v6', 'v7', 'v8']):
        e(f's_add_u32 m0, s44, {1024*k}')
        e('s_nop 0')
        e(f'buffer_load_dwordx4 {src}, s[20:23], 0 offen lds')
    e('s_cmp_ge_u32 s3, 4')
    e(f's_cbranch_scc1 {N}_helper')

    e.c('compute wave')
    e('s_cmp_lg_u32 s3, 0')
    e(f's_cbranch_scc1 {N}_noinit')
    e('v_lshlrev_b32 v9, 2, v0')
    e(f'v_add_u32 v9, {FLAG_T}, v9')
    e('v_mov_b32 v10, 0')
    e('v_mov_b32 v11, 0xff80')
    e('v_cmp_eq_u32 vcc, 16, v0')
    e('s_nop 1')
    e('v_cndmask_b32 v10, v10, v11, vcc')
    e('s_mov_b64 exec, 0x1ffff')
    e('ds_write_b32 v9, v10')
    e('s_mov_b64 exec, -1')
    e.lab(f'{N}_noinit')
    assert DUMMY == FLAG_T + 64
    e('v_lshrrev_b32 v8, 2, v3')
    e('v_and_b32 v9, 3, v3')
    e('v_lshl_add_u32 v10, v2, 3, v8')
    e('v_lshlrev_b32 v10, 8, v10')
    e('v_lshl_add_u32 v10, v9, 3, v10')
    e('v_and_b32 v11, 1, v2')
    e('v_lshl_add_u32 v11, v11, 2, v8')
    e('v_lshl_add_u32 v10, v11, 5, v10')
    e(f'v_add_u32 v4, {X_BASE}, v10')
    for t in range(1, 8): e(f'v_xor_b32 v{4+t}, {32*t}, v4')
    e('v_xor_b32 v12, s3, v2')
    e('v_lshlrev_b32 v12, 4, v12')
    e('s_lshl_b32 s46, s3, 8')
    e('v_add_u32 v12, s46, v12')
    e('v_and_b32 v13, 1, v0')
    e('v_lshlrev_b32 v13, 4, v13')
    e('v_mov_b32 v14, 0xffff')
    e('v_lshlrev_b32 v13, v13, v14')
    e('v_and_b32 v14, 2, v0')
    e('v_cmp_eq_u32 vcc, 0, v14')
    e('v_mov_b32 v15, 0')
    e(f'v_lshlrev_b32 v1, 3, v2')
    e('v_cndmask_b32 v14, v15, v13, vcc')
    e('v_cndmask_b32 v13, v13, v15, vcc')
    e(f'v_add_u32 v1, {S_H}, v1')
    e('s_waitcnt vmcnt(0) lgkmcnt(0)')
    st('preB1', 1)
    e('s_barrier')
    st('B1', 2)
    for s in range(4):
        if s == 0: e(f'ds_read_b128 {vr(32,4)}, v12')
        else:
            e(f'v_xor_b32 v15, {64*s}, v12')
            e(f'ds_read_b128 {vr(32+4*s,4)}, v15')
    HP = A0 + 96; BP = A0 + 112
    for t in range(8): e(f'ds_read_b64 {vr(HP+2*t,2)}, v1 offset:{32*t}')
    e('s_waitcnt lgkmcnt(8)')
    for s in range(4):
        for q in range(2):
            e(f'v_and_b32 v{32+4*s+2*q}, v{32+4*s+2*q}, v14')
            e(f'v_and_b32 v{32+4*s+2*q+1}, v{32+4*s+2*q+1}, v13')
    for t in range(7): e(f'ds_read_b64 {vr(BP+2*t,2)}, v1 offset:{256+32*t}')
    e('s_waitcnt lgkmcnt(7)')
    e(f'ds_read_b64 {vr(BP+14,2)}, v1 offset:{256+32*7}')
    def trread(k):
        t, s, q = k >> 3, (k >> 1) & 3, k & 1
        e(f'ds_read_b64_tr_b16 {vr(48 + 2*(k % 8), 2)}, v{4+t} offset:{8192*s + 1024*q}')
    for t in range(8):
        for q in range(2):
            e(f'v_lshlrev_b32 v{H0+4*t+2*q}, 16, v{HP+2*t+q}')
            e(f'v_and_b32 v{H0+4*t+2*q+1}, 0xffff0000, v{HP+2*t+q}')
    e('s_waitcnt lgkmcnt(0)')
    for k in range(8): trread(k)
    for t in range(8):
        for q in range(2):
            e(f'v_lshlrev_b32 v{BI0+4*t+2*q}, 16, v{BP+2*t+q}')
            e(f'v_and_b32 v{BI0+4*t+2*q+1}, 0xffff0000, v{BP+2*t+q}')
    def cvts(k):
        t, s, q = k >> 3, (k >> 1) & 3, k & 1
        d = 16 + 4*(k % 4)
        a = A0 + 16*t + 4*s + 2*q
        e(f'v_cvt_pk_bf16_f32 v{a}, v{d}, v{d+1}')
        e(f'v_cvt_pk_bf16_f32 v{a+1}, v{d+2}, v{d+3}')
    for k in range(64):
        t, s, q = k >> 3, (k >> 1) & 3, k & 1
        if k % 4 == 0:
            rem = min(64 - k, 8) - 4
            e(f's_waitcnt lgkmcnt({rem})')
        e(f'v_mfma_f32_4x4x4_16b_bf16 {vr(16 + 4*(k % 4), 4)}, {vr(32+4*s+2*q, 2)}, {vr(48 + 2*(k % 8), 2)}, 0')
        if k == 3: e('s_nop 1')
        if k >= 3: cvts(k - 3)
        if k % 4 == 3:
            for kk in range(k + 5, min(k + 9, 64)): trread(kk)
    e('s_nop 2')
    cvts(61); cvts(62); e('s_nop 0'); cvts(63)
    e('v_xor_b32 v4, v2, v3')
    e('v_lshlrev_b32 v4, 4, v4')
    e('v_lshl_add_u32 v4, v3, 8, v4')
    for s in range(1, 4): e(f'v_xor_b32 v{BA0+s}, {64*s}, v4')
    e('s_lshl_b32 s46, s3, 11')
    e(f's_add_u32 s46, s46, {R_BASE - 256}')
    e('v_lshlrev_b32 v1, 2, v0')
    e('v_add_u32 v1, s46, v1')
    e(f'v_mov_b32 v3, {FLAG_T}')
    st('formed', 3)
    e('s_barrier')
    st('B2', 4)
    for s in range(4): e(f'ds_read_b128 {BF(0,s)}, v{BA0+s}')
    e('s_mov_b32 s47, 0')
    e.lab(f'{N}_loop')
    e('s_cmp_lg_u32 s47, 2')
    e(f's_cbranch_scc1 {N}_nopoll')
    e.lab(f'{N}_poll')
    e('ds_read_b128 v[12:15], v3')
    e('s_waitcnt lgkmcnt(0)')
    e('v_add3_u32 v12, v12, v13, v14')
    e('v_add_u32 v12, v12, v15')
    e('s_nop 0')
    e('v_readfirstlane_b32 s46, v12')
    e('s_cmp_lg_u32 s46, 4')
    e(f's_cbranch_scc1 {N}_poll')
    e.lab(f'{N}_nopoll')
    def fma(C, r):
        Cm = C % 32
        j, t = Cm >> 3, Cm & 7
        d = D0 + 4*(Cm % 4) + r
        if t == 0 and r == 0: e(f'v_mul_f32 v{P0+j}, |v{d}|, v{H0+4*t+r}')
        else: e(f'v_fma_f32 v{P0+j}, |v{d}|, v{H0+4*t+r}, v{P0+j}')
    for m in range(128):
        j, t, s = m >> 5, (m >> 2) & 7, m & 3
        C = m >> 2
        if m % 32 == 0: e('s_waitcnt lgkmcnt(0)')
        c_in = BI(t) if s == 0 else D(C % 4)
        e(f'v_mfma_f32_16x16x32_bf16 {D(C % 4)}, {A(t,s)}, {BF(j & 1, s)}, {c_in}')
        fma(C - 2, s)
        mt = m & 31
        if mt in (1, 5, 9, 13):
            sn = mt >> 2
            e(f'ds_read_b128 {BF((j+1) & 1, sn)}, v{BA0+sn} offset:{4096*(j+1)}')
        if m == 9: e(f'v_permlane16_swap_b32 v{P0+2}, v{P0+3}')
        if m == 10: e(f'v_add_f32 v{P0+2}, v{P0+2}, v{P0+3}')
        if m == 12: e(f'v_permlane32_swap_b32 v2, v{P0+2}')
        if m == 13: e(f'v_add_f32 v2, v2, v{P0+2}')
        if m == 14: e('ds_write_b32 v1, v2')
        if m == 15: e('v_add_u32 v1, 256, v1')
        if m == 73: e(f'v_permlane16_swap_b32 v{P0}, v{P0+1}')
        if m == 74: e(f'v_add_f32 v2, v{P0}, v{P0+1}')
        if m >= 113 and m < 117:
            e(f'v_add_u32 v{BA0 + m - 113}, 16384, v{BA0 + m - 113}')
    e('s_add_u32 s47, s47, 1')
    e('s_cmp_lt_u32 s47, 8')
    e(f's_cbranch_scc1 {N}_loop')
    e('s_nop 7')
    for C in (30, 31):
        for r in range(4): fma(C, r)
    e('s_nop 1')
    e(f'v_permlane16_swap_b32 v{P0+2}, v{P0+3}')
    e(f'v_add_f32 v{P0+2}, v{P0+2}, v{P0+3}')
    e('s_nop 1')
    e(f'v_permlane32_swap_b32 v2, v{P0+2}')
    e(f'v_add_f32 v2, v2, v{P0+2}')
    e('ds_write_b32 v1, v2')
    st('mainend', 5)
    e(f's_branch {N}_fin')

    e.lab(f'{N}_helper')
    e.c('helper wave; hw = wave-4 in s50')
    e('s_sub_u32 s50, s3, 4')
    e('s_mov_b32 s16, s4'); e('s_mov_b32 s17, s5'); e('s_mov_b32 s18, 256000'); e('s_mov_b32 s19, 0x00020000')
    e('s_lshl_b32 s42, s50, 2')
    e('v_add_u32 v6, s42, v2')
    e('v_xor_b32 v7, v3, v6')
    e('v_lshlrev_b32 v7, 4, v7')
    e('v_add_u32 v6, s40, v6')
    e('v_lshl_add_u32 v120, v6, 8, v7')
    e('s_lshl_b32 s44, s50, 10')
    e('s_mov_b32 s45, 256000')
    def tpiece(m):
        if m > 0: e('v_add_u32 v120, 4096, v120')
        e('v_subrev_u32 v9, s45, v120')
        e(f's_add_u32 m0, s44, {4096*m}')
        e('v_min_u32 v9, v9, v120')
        e('buffer_load_dwordx4 v9, s[16:19], 0 offen lds')
    for m in range(4): tpiece(m)
    e('v_lshrrev_b32 v8, 2, v3')
    e('v_and_b32 v9, 3, v3')
    e('v_lshl_add_u32 v8, v8, 3, v9')
    e('v_and_b32 v9, 7, v3')
    e('v_lshlrev_b32 v9, 1, v9')
    e('v_xor_b32 v9, v9, v2')
    e('v_lshlrev_b32 v9, 4, v9')
    e('v_lshl_add_u32 v8, v8, 8, v9')
    e('s_lshl_b32 s46, s50, 13')
    e(f's_add_u32 s46, s46, {X_BASE}')
    e('v_add_u32 v4, s46, v8')
    for k in range(1, 4): e(f'v_xor_b32 v{4+k}, {64*k}, v4')
    e('v_lshrrev_b32 v8, 2, v3')
    e('v_add_u32 v9, s42, v2')
    e('v_xor_b32 v9, v9, v8')
    e('v_lshlrev_b32 v9, 4, v9')
    e('v_lshl_add_u32 v12, v8, 8, v9')
    e('v_lshlrev_b32 v10, 4, v2')
    e(f'v_add_u32 v10, {S_H}, v10')
    e('s_lshl_b32 s46, s50, 6')
    e('v_add_u32 v11, s46, v10')
    e('v_lshlrev_b32 v15, 2, v0')
    e(f'v_add_u32 v15, {S_H}, v15')
    e('v_and_b32 v8, 3, v3')
    e(f'v_mov_b32 v9, {f2u(C_LIN):#x}')
    e('v_mov_b32 v16, 0')
    e('v_cmp_eq_u32 vcc, 0, v8')
    e('v_mov_b32 v17, -1')
    e('s_nop 0')
    e('v_cndmask_b32 v13, v16, v9, vcc')
    e('v_cmp_eq_u32 vcc, 1, v8')
    e('s_nop 1')
    e('v_cndmask_b32 v14, v16, v17, vcc')
    e('s_waitcnt vmcnt(3)')
    e('s_barrier')
    for m in range(4, 9): tpiece(m)
    for half in range(2):
        for k in range(4):
            e(f'ds_read_b128 {vr(160 + 16*half + 4*k, 4)}, v{4+k} offset:{1024*half}')
    for k in range(4): e(f'ds_read_b128 {vr(32+4*k,4)}, v10 offset:{64*k}')
    e('s_waitcnt lgkmcnt(4)')
    e('ds_read_b128 v[48:51], v11 offset:512')
    e('ds_read_b128 v[52:55], v12')
    e('ds_read_b32 v64, v15')
    e('ds_read_b32 v65, v15 offset:256')
    e('s_waitcnt vmcnt(0) lgkmcnt(0)')
    e('s_barrier')
    for half in range(2):
        dd = vr(128 + 4*half, 4)
        for k in range(4):
            cin = '0' if k == 0 else dd
            e(f'v_mfma_f32_16x16x32_bf16 {dd}, {vr(160 + 16*half + 4*k, 4)}, {vr(32+4*k,4)}, {cin}')
    e('v_lshlrev_b32 v66, 16, v64'); e('v_and_b32 v67, 0xffff0000, v64')
    e('v_lshlrev_b32 v68, 16, v65'); e('v_and_b32 v69, 0xffff0000, v65')
    e('v_mul_f32 v66, v66, |v68|')
    e('v_fma_f32 v66, v67, |v69|, v66')
    for mode in ['row_ror:8 row_mask:0xf', 'row_ror:4 row_mask:0xf', 'row_ror:2 row_mask:0xf', 'row_ror:1 row_mask:0xf', 'row_bcast:15 row_mask:0xa', 'row_bcast:31 row_mask:0xc']:
        e('s_nop 1'); e(f'v_add_f32_dpp v66, v66, v66 {mode} bank_mask:0xf')
    e('s_nop 1')
    e('v_readlane_b32 s48, v66, 63')
    e(f's_mov_b32 s49, {f2u(-C_LIN):#x}')
    for i in range(4): e(f'v_and_b32 v{48+i}, v{48+i}, v14')
    e('v_mov_b32 v70, s49')
    e('v_mul_f32 v100, s48, v70')
    e('v_mov_b32 v101, 0'); e('v_mov_b32 v102, 0'); e('v_mov_b32 v103, 0')
    for jj in range(0, 8, 2):
        g0 = 128 + jj; pp = 48 + jj//2; tt = 52 + jj//2
        e(f'v_lshlrev_b32 v16, 16, v{pp}'); e(f'v_and_b32 v17, 0xffff0000, v{pp}')
        e(f'v_fma_f32 v16, v{g0}, v13, v16'); e(f'v_fma_f32 v17, v{g0+1}, v13, v17')
        e(f'v_lshlrev_b32 v18, 16, v{tt}'); e(f'v_and_b32 v19, 0xffff0000, v{tt}')
        e('v_mul_f32 v16, v16, v18'); e('v_mul_f32 v17, v17, v19')
        e(f'v_cvt_pk_bf16_f32 v{72 + jj//2}, v16, v17')
    e('v_lshlrev_b32 v8, 4, v0')
    e(f'v_add_u32 v8, {AFR}, v8')
    e('v_add_u32 v9, s44, v8')
    e('ds_write_b128 v9, v[72:75]')
    e('s_lshl_b32 s46, s50, 2')
    e(f's_add_u32 s46, s46, {FLAG_A}')
    e('v_mov_b32 v10, s46')
    e('v_mov_b32 v11, 1')
    e('s_waitcnt lgkmcnt(0)')
    e('ds_write_b32 v10, v11')
    for m in range(9, 31): tpiece(m)
    e('s_cmp_ge_u32 s50, 2')
    e(f's_cbranch_scc1 {N}_nolast')
    tpiece(31)
    e.lab(f'{N}_nolast')
    e(f'v_mov_b32 v12, {FLAG_T}')
    e.lab(f'{N}_pollA')
    e('ds_read_b128 v[16:19], v12 offset:16')
    e('s_waitcnt lgkmcnt(0)')
    e('v_add3_u32 v16, v16, v17, v18')
    e('v_add_u32 v16, v16, v19')
    e('s_nop 0')
    e('v_readfirstlane_b32 s46, v16')
    e('s_cmp_lg_u32 s46, 4')
    e(f's_cbranch_scc1 {N}_pollA')
    for s in range(4): e(f'ds_read_b128 {vr(72+4*s,4)}, v8 offset:{1024*s}')
    e('v_xor_b32 v4, v2, v3')
    e('v_lshlrev_b32 v4, 4, v4')
    e('v_lshl_add_u32 v4, v3, 8, v4')
    e('s_lshl_b32 s51, s50, 12')
    e('v_add_u32 v4, s51, v4')
    for s in range(1, 4): e(f'v_xor_b32 v{4+s}, {64*s}, v4')
    e('v_lshlrev_b32 v8, 12, v2')
    e('v_lshl_add_u32 v8, v3, 3, v8')
    e('s_lshl_b32 s51, s50, 7')
    e(f's_add_u32 s51, s51, {LS_BASE}')
    e('v_add_u32 v8, s51, v8')
    e('v_add_u32 v10, -16, v10')
    e('s_waitcnt vmcnt(0)')
    e('ds_write_b32 v10, v11')
    e('s_mov_b32 s56, s52'); e('s_mov_b32 s57, s53'); e(f's_mov_b32 s58, {4096*26*4}'); e('s_mov_b32 s59, 0x00020000')
    e('s_mov_b32 s36, s6'); e('s_mov_b32 s37, s7'); e('s_mov_b32 s38, 0x10000000'); e('s_mov_b32 s39, 0x00020000')
    e('v_lshlrev_b32 v89, 4, v0')
    e('v_lshlrev_b32 v91, 2, v0')
    e('s_mul_i32 s60, s50, 106496')
    e('s_add_u32 s61, s60, 4096')
    XR = 128
    def scanload(i):
        so = 's60' if i < 4 else 's61'
        e(f'buffer_load_dwordx4 {vr(XR+4*i,4)}, v89, s[56:59], {so} offen offset:{1024*(i%4)}')
    for i in range(8): scanload(i)
    e('s_add_u32 s60, s60, 8192'); e('s_add_u32 s61, s61, 8192')
    e.lab(f'{N}_pollT')
    e('ds_read_b128 v[16:19], v12')
    e('s_waitcnt lgkmcnt(0)')
    e('v_add3_u32 v16, v16, v17, v18')
    e('v_add_u32 v16, v16, v19')
    e('s_nop 0')
    e('v_readfirstlane_b32 s46, v16')
    e('s_cmp_lg_u32 s46, 4')
    e(f's_cbranch_scc1 {N}_pollT')
    st('hTland', 1)
    for i in range(8):
        off = 16384 * i
        if i == 4:
            for s in range(4): e(f'v_add_u32 v{4+s}, 65536, v{4+s}')
        buf = 160 + 16*(i & 1)
        if i == 0:
            for s in range(4): e(f'ds_read_b128 {vr(buf+4*s,4)}, v{4+s} offset:{off % 65536}')
        e('s_waitcnt lgkmcnt(0)')
        if i < 7:
            noff = 16384 * (i+1); nbuf = 160 + 16*((i+1) & 1)
            if i + 1 == 4:
                pass
        dd = vr(192 + 4*(i & 1), 4)
        for s in range(4):
            cin = vr(100,4) if s == 0 else dd
            e(f'v_mfma_f32_16x16x32_bf16 {dd}, {vr(72+4*s,4)}, {vr(buf+4*s,4)}, {cin}')
        if i < 7:
            if i + 1 == 4:
                for s in range(4): e(f'v_add_u32 v{20+s}, 65536, v{4+s}')
                for s in range(4): e(f'ds_read_b128 {vr(nbuf+4*s,4)}, v{20+s} offset:0')
            else:
                for s in range(4): e(f'ds_read_b128 {vr(nbuf+4*s,4)}, v{4+s} offset:{noff % 65536}')
        e('s_nop 4' if i < 7 else 's_nop 7')
        e(f'ds_write_b64 v8, {vr(192 + 4*(i & 1), 2)} offset:{512*i}')
    st('hLS', 3)
    e('s_mul_i32 s62, s50, 26624')
    e(f's_mul_i32 s63, s50, {4*LCAP}')
    e(f's_add_u32 s63, s63, {LIST}')
    e(f's_add_u32 s54, s63, {4*LCAP}')
    e('s_mov_b32 s55, s63')
    e('s_mov_b32 s51, 0')
    e('s_mov_b32 s49, 0')
    e('v_mov_b32 v93, 0x80000000')
    e('s_mov_b32 s41, 165191050'); e('s_movk_i32 s42, 1000'); e('s_movk_i32 s43, 500'); e(f's_mov_b32 s45, {NEG_BIG:#x}')
    gen_scan(e, N + '_f', XR, fast=True)
    st('hscan', 5)
    e('s_sub_u32 s46, s63, s55')
    e('s_lshr_b32 s46, s46, 2')
    e('s_or_b32 s46, s46, 0x80000000')
    e('s_cmp_lg_u32 s49, 0')
    e('s_cselect_b32 s46, -1, s46')
    e('v_mov_b32 v16, s46')
    e('v_add_u32 v10, 32, v10')
    e('s_waitcnt lgkmcnt(0)')
    e('ds_write_b32 v10, v16')
    e.lab(f'{N}_pollC')
    e('ds_read_b128 v[16:19], v12 offset:32')
    e('s_waitcnt lgkmcnt(0)')
    e('v_and_b32 v20, v16, v17')
    e('v_and_b32 v21, v18, v19')
    e('v_and_b32 v20, v20, v21')
    e('s_nop 0')
    e('v_readfirstlane_b32 s46, v20')
    e('s_cmp_ge_i32 s46, 0')
    e(f's_cbranch_scc1 {N}_pollC')
    e('v_readfirstlane_b32 s64, v16'); e('v_readfirstlane_b32 s65, v17')
    e('v_readfirstlane_b32 s66, v18'); e('v_readfirstlane_b32 s67, v19')
    e('s_mov_b32 s49, 0')
    for r in ('s64', 's65', 's66', 's67'):
        e(f's_cmp_eq_u32 {r}, -1')
        e('s_cselect_b32 s49, 1, s49')
        e(f's_and_b32 {r}, {r}, 0x7fffffff')
    e('s_add_u32 s76, s64, s65')
    e('s_add_u32 s77, s76, s66')
    e('s_add_u32 s78, s77, s67')
    e('s_cmp_gt_u32 s78, 512')
    e('s_cselect_b32 s49, 1, s49')
    pass
    e('s_cmp_lg_u32 s49, 0')
    e(f's_cbranch_scc1 {N}_hskip')
    e('s_lshl_b32 s46, s50, 7')
    for beta in range(2):
        vi = 16 + beta
        va = 18 + beta
        e(f'v_add_u32 v{vi}, s46, v0')
        if beta == 1: e(f'v_add_u32 v{vi}, 64, v{vi}')
        e(f'v_lshlrev_b32 v{va}, 2, v{vi}')
        e(f'v_add_u32 v{va}, {LIST}, v{va}')
        for (o, n) in (('s64', 's64'), ('s76', 's65'), ('s77', 's66')):
            e(f's_lshl_b32 s79, {n}, 2')
            e(f's_sub_u32 s79, {4*LCAP}, s79')
            e(f'v_cmp_le_u32 vcc, {o}, v{vi}')
            e(f'v_mov_b32 v20, s79')
            e('s_nop 0')
            e(f'v_cndmask_b32 v20, 0, v20, vcc')
            e(f'v_add_u32 v{va}, v{va}, v20')
        e(f'v_cmp_gt_u32 s[{80+2*beta}:{81+2*beta}], s78, v{vi}')
        e(f'v_mov_b32 v21, {LIST}')
        e('s_nop 0')
        e(f'v_cndmask_b32 v{va}, v21, v{va}, s[{80+2*beta}:{81+2*beta}]')
        e(f'ds_read_b32 v{104+beta}, v{va}')
    e('s_waitcnt lgkmcnt(0)')
    for beta in range(2): e(f'v_cndmask_b32 v{104+beta}, 0, v{104+beta}, s[{80+2*beta}:{81+2*beta}]')
    RB = [128, 160]
    e('s_waitcnt vmcnt(0)')
    for beta in range(2): prep(e, 104+beta, 106+beta, 108+beta, RB[beta], 112, load_only=True)
    e('s_waitcnt vmcnt(8)')
    prep(e, 104, 106, 108, RB[0], 112, calc_only=True)
    e('s_waitcnt vmcnt(0)')
    prep(e, 105, 107, 109, RB[1], 112, calc_only=True)
    e.lab(f'{N}_hskip')
    st('hprep', 2)

    e.lab(f'{N}_fin')
    e('s_waitcnt lgkmcnt(0)')
    e('s_barrier')
    st('B3', 6)
    e('s_lshl_b32 s46, s3, 6')
    e('v_add_u32 v1, s46, v0')
    e('v_lshlrev_b32 v2, 4, v1')
    e(f'v_add_u32 v3, {R_BASE}, v2')
    e('v_lshlrev_b32 v4, 5, v1')
    e(f'v_add_u32 v4, {LS_BASE}, v4')
    e('ds_read_b128 v[8:11], v3')
    e('ds_read_b128 v[12:15], v4')
    e('ds_read_b128 v[16:19], v4 offset:16')
    e(f's_mov_b32 s46, {f2u(C_LIN):#x}')
    e('s_waitcnt lgkmcnt(0)')
    e('v_fma_f32 v8, v8, s46, v12'); e('v_fma_f32 v9, v9, s46, v14')
    e('v_fma_f32 v10, v10, s46, v16'); e('v_fma_f32 v11, v11, s46, v18')
    e('v_cvt_pk_bf16_f32 v8, v8, v13'); e('v_cvt_pk_bf16_f32 v9, v9, v15')
    e('v_cvt_pk_bf16_f32 v10, v10, v17'); e('v_cvt_pk_bf16_f32 v11, v11, v19')
    e('ds_write_b128 v3, v[8:11]')
    e('s_waitcnt lgkmcnt(0)')
    e('s_barrier')
    st('B4', 7)
    if stamps: e('s_waitcnt lgkmcnt(0)')
    e('s_cmp_lt_u32 s3, 4')
    e(f's_cbranch_scc1 {N}_end')
    e('s_cmp_lg_u32 s49, 0')
    e(f's_cbranch_scc1 {N}_slow')
    ET = 192
    lookup_issue(e, RB[0], 0, 15)
    e('s_waitcnt lgkmcnt(4)')
    lookup_issue(e, RB[0], 15, 26)
    e('s_waitcnt lgkmcnt(0)')
    lookup_issue(e, RB[1], 0, 15)
    lookup_calc(e, RB[0], ET, 224)
    e('s_waitcnt lgkmcnt(4)')
    lookup_issue(e, RB[1], 15, 26)
    e('v_lshlrev_b32 v16, 4, v104')
    e('s_mov_b64 exec, s[80:81]')
    e(f'buffer_store_dwordx4 v[224:227], v16, s[36:39], 0 offen')
    e('s_mov_b64 exec, -1')
    e('s_waitcnt lgkmcnt(0)')
    lookup_calc(e, RB[1], ET, 228)
    e('v_lshlrev_b32 v17, 4, v105')
    e('s_mov_b64 exec, s[82:83]')
    e(f'buffer_store_dwordx4 v[228:231], v17, s[36:39], 0 offen')
    e('s_mov_b64 exec, -1')
    e(f's_branch {N}_end')
    e.lab(f'{N}_slow')
    gen_slow(e, N)
    e.lab(f'{N}_end')
    if stamps:
        e('s_waitcnt vmcnt(0)')
        e(f's_memrealtime s[100:101]')
        e('s_waitcnt lgkmcnt(0)')
        for i in range(9): e(f'v_mov_b32 v{8+i}, s{STAMP0+2*i}')
        e('v_mov_b32 v17, 0')
        e('s_lshl_b32 s46, s2, 3'); e('s_add_u32 s46, s46, s3'); e('s_lshl_b32 s46, s46, 6'); e('s_add_u32 s46, s46, 0x900000')
        e('s_mov_b32 s36, s6'); e('s_mov_b32 s37, s7'); e('s_mov_b32 s38, 0x10000000'); e('s_mov_b32 s39, 0x00020000')
        e('v_mov_b32 v2, s46')
        e('v_cmp_eq_u32 vcc, 0, v0')
        e('s_and_saveexec_b64 s[50:51], vcc')
        e(f's_cbranch_execz {N}_done')
        e('buffer_store_dwordx4 v[8:11], v2, s[36:39], 0 offen')
        e('buffer_store_dwordx4 v[12:15], v2, s[36:39], 0 offen offset:16')
        e('buffer_store_dwordx2 v[16:17], v2, s[36:39], 0 offen offset:32')
    e.lab(f'{N}_done')
    e('s_endpgm')
    return e.txt()

def gen_scan(e, L, XR, fast):
    T = 94
    e.lab(f'{L}_scan')
    e('v_mov_b32 v90, 0')
    for pr in range(4):
        i0 = 2*pr
        e('s_waitcnt vmcnt(6)')
        for q in range(8):
            e(f'v_xor_b32 v{T+q}, s40, v{XR + 4*i0 + q}')
        for i in (i0, i0+1):
            so = 's60' if i < 4 else 's61'
            e(f'buffer_load_dwordx4 {vr(XR+4*i,4)}, v89, s[56:59], {so} offen offset:{1024*(i%4)}')
        for q in range(8):
            e(f'v_cmp_gt_u32 s[{64+2*q}:{65+2*q}], 4, v{T+q}')
        for q in range(8):
            e(f'v_addc_co_u32 v90, vcc, v90, v90, s[{64+2*q}:{65+2*q}]')
    e('s_add_u32 s60, s60, 8192'); e('s_add_u32 s61, s61, 8192')
    e.lab(f'{L}_ex')
    e('v_cmp_ne_u32 vcc, 0, v90')
    e(f's_cbranch_vccz {L}_exdone')
    e('s_bcnt1_i32_b64 s46, vcc')
    e('s_lshl2_add_u32 s46, s46, s63')
    e('s_cmp_gt_u32 s46, s54')
    e(f's_cbranch_scc1 {L}_ovf')
    e('s_and_saveexec_b64 s[80:81], vcc')
    e('v_ffbh_u32 v94, v90')
    e('v_mbcnt_lo_u32_b32 v97, vcc_lo, 0')
    e('v_lshrrev_b32 v95, 2, v94')
    e('v_and_b32 v96, 3, v94')
    e('v_mbcnt_hi_u32_b32 v97, vcc_hi, v97')
    e('v_lshl_add_u32 v95, v95, 8, v96')
    e('v_lshrrev_b32 v96, v94, v93')
    e('v_add3_u32 v95, v95, s62, v91')
    e('v_xor_b32 v90, v90, v96')
    e('v_lshl_add_u32 v97, v97, 2, s63')
    e('ds_write_b32 v97, v95')
    e('s_mov_b32 s63, s46')
    e('s_mov_b64 exec, s[80:81]')
    e(f's_branch {L}_ex')
    e.lab(f'{L}_ovf')
    e('s_mov_b32 s49, 1')
    e('s_mov_b32 s51, 12')
    e.lab(f'{L}_exdone')
    e('s_add_u32 s62, s62, 2048')
    e('s_add_u32 s51, s51, 1')
    e('s_cmp_lt_u32 s51, 13')
    e(f's_cbranch_scc1 {L}_scan')

def gen_slow(e, N):
    e('s_mul_i32 s60, s50, 106496')
    e('s_mul_i32 s62, s50, 26624')
    e('s_mov_b32 s51, 0')
    e.lab(f'{N}_sl_g')
    e('buffer_load_dwordx4 v[232:235], v89, s[56:59], s60 offen')
    e('s_waitcnt vmcnt(0)')
    for k in range(4):
        e(f'v_xor_b32 v16, s40, v{232+k}')
        e('v_cmp_gt_u32 vcc, 4, v16')
        e(f's_cbranch_vccz {N}_sl_k{k}')
        e('s_and_saveexec_b64 s[80:81], vcc')
        e(f's_add_u32 s46, s62, {k}')
        e('v_add_u32 v104, s46, v91')
        prep(e, 104, 106, 108, 128, 112, load_only=True)
        e('s_waitcnt vmcnt(0)')
        prep(e, 104, 106, 108, 128, 112, calc_only=True)
        lookup_issue(e, 128, 0, 15)
        e('s_waitcnt lgkmcnt(4)')
        lookup_issue(e, 128, 15, 26)
        e('s_waitcnt lgkmcnt(0)')
        lookup_calc(e, 128, 192, 224)
        e('v_lshlrev_b32 v16, 4, v104')
        e('buffer_store_dwordx4 v[224:227], v16, s[36:39], 0 offen')
        e('s_mov_b64 exec, s[80:81]')
        e.lab(f'{N}_sl_k{k}')
    e('s_add_u32 s60, s60, 1024')
    e('s_add_u32 s62, s62, 256')
    e('s_add_u32 s51, s51, 1')
    e('s_cmp_lt_u32 s51, 104')
    e(f's_cbranch_scc1 {N}_sl_g')

def k2c(name, stamps=False):
    e = Em(); N = name
    e.l.append(f'.p2align 8\n.type {name},@function\n{name}:')
    e('s_cmp_ge_u32 s2, 128')
    e(f's_cbranch_scc1 {N}_done')
    if stamps: e('s_memrealtime s[40:41]')
    e('s_load_dwordx2 s[4:5], s[0:1], 80')
    e('s_load_dwordx2 s[6:7], s[0:1], 64')
    e('v_lshrrev_b32 v1, 6, v0')
    e('v_and_b32 v0, 63, v0')
    e('v_readfirstlane_b32 s3, v1')
    e('v_lshrrev_b32 v2, 5, v0')
    e('v_and_b32 v3, 31, v0')
    e('s_lshl_b32 s8, s2, 2'); e('s_add_u32 s8, s8, s3')
    e('s_lshl_b32 s9, s8, 3')
    e('v_mul_u32_u24 v4, 26, v2')
    e('v_add_u32 v4, v4, v3')
    e('v_lshlrev_b32 v4, 4, v4')
    e('s_mul_i32 s10, s9, 416')
    for q in range(4):
        e(f'v_mov_b32 v{8+4*q}, {NEG_BIG:#x}'); e(f'v_mov_b32 v{9+4*q}, 0'); e(f'v_mov_b32 v{10+4*q}, 0')
    e('v_cmp_gt_u32 vcc, 26, v3')
    e('s_waitcnt lgkmcnt(0)')
    e('s_mov_b32 s12, s4'); e('s_mov_b32 s13, s5'); e(f's_mov_b32 s14, {106496*16}'); e('s_mov_b32 s15, 0x00020000')
    e('s_mov_b32 s16, s6'); e('s_mov_b32 s17, s7'); e('s_mov_b32 s18, 8192'); e('s_mov_b32 s19, 0x00020000')
    e('s_and_saveexec_b64 s[20:21], vcc')
    for q in range(4):
        e(f'buffer_load_dwordx3 {vr(8+4*q,3)}, v4, s[12:15], s10 offen offset:{832*q}')
    e('s_mov_b64 exec, s[20:21]')
    e('s_waitcnt vmcnt(0)')
    if stamps: e('s_memrealtime s[42:43]')
    def allred(op, regs):
        for mode in ['row_ror:8', 'row_ror:4', 'row_ror:2', 'row_ror:1']:
            for r in regs: e(f'{op}_dpp v{r}, v{r}, v{r} {mode} row_mask:0xf bank_mask:0xf')
            if len(regs) < 3: e('s_nop 1')
        for r in regs: e(f'v_mov_b32 v{r+32}, v{r}')
        e('s_nop 1')
        for r in regs: e(f'v_permlane16_swap_b32 v{r}, v{r+32}')
        for r in regs: e(f'{op} v{r}, v{r}, v{r+32}')
    for q in range(4): e(f'v_mov_b32 v{24+q}, v{8+4*q}')
    e('s_nop 1')
    allred('v_max_f32', [24, 25, 26, 27])
    for q in range(4): e(f'v_sub_f32 v{8+4*q}, v{8+4*q}, v{24+q}')
    for q in range(4): e(f'v_exp_f32 v{8+4*q}, v{8+4*q}')
    e('s_nop 0')
    for q in range(4):
        e(f'v_mul_f32 v{24+q}, v{9+4*q}, v{8+4*q}')
        e(f'v_mul_f32 v{28+q}, v{10+4*q}, v{8+4*q}')
    e('s_nop 1')
    allred('v_add_f32', [24, 25, 26, 27, 28, 29, 30, 31])
    for q in range(4): e(f'v_rcp_f32 v{24+q}, v{24+q}')
    e('s_nop 0')
    for q in range(4): e(f'v_mul_f32 v{24+q}, v{24+q}, v{28+q}')
    for q in range(4): e(f'v_cvt_pk_bf16_f32 v{24+q}, v{24+q}, v{24+q}')
    e('s_lshl_b32 s10, s9, 1')
    e('v_lshlrev_b32 v4, 1, v2')
    e('v_add_u32 v4, s10, v4')
    e('v_cmp_eq_u32 vcc, 0, v3')
    e('s_and_saveexec_b64 s[20:21], vcc')
    for q in range(4): e(f'buffer_store_short v{24+q}, v4, s[16:19], 0 offen offset:{4*q}')
    if stamps:
        e('s_memrealtime s[44:45]')
        e('s_waitcnt lgkmcnt(0)')
        e('v_mov_b32 v8, s40'); e('v_mov_b32 v9, s42'); e('v_mov_b32 v10, s44'); e('v_mov_b32 v11, 0')
        e('s_lshl_b32 s10, s8, 4'); e('s_add_u32 s10, s10, 0x800000')
        e('v_mov_b32 v4, s10')
        e('s_mov_b32 s14, 0x10000000')
        e('s_mov_b64 exec, 1')
        e('buffer_store_dwordx4 v[8:11], v4, s[12:15], 0 offen')
    e.lab(f'{N}_done')
    e('s_endpgm')
    return e.txt()
```

```python
import struct
LOG2E = 1.4426950408889634
C_LIN = 0.5 * LOG2E
def f2u(x): return struct.unpack('<I', struct.pack('<f', x))[0]

NPROD = 6
PCH = 17758
NEL = 4096 * 26
BUCK_OFF = 0x200000
BUCK_P = 65536
SMALL = 129024
S_H, S_B, S_P = SMALL, SMALL + 256, SMALL + 512
FLAG_T, FLAG_A, FLAG_I, PFX, DUMMY = SMALL + 768, SMALL + 784, SMALL + 800, SMALL + 816, SMALL + 864
X_BASE = 131072
LS_BASE = X_BASE
R_BASE = X_BASE + 16384 + 256
AFR = R_BASE + 8192
STG = AFR + 4096
NEG_BIG = f2u(-1e30)
DUMMY_VAL = 0x0000ff80

class Em:
    def __init__(self): self.l = []
    def __call__(self, s): self.l.append('    ' + s)
    def lab(self, s): self.l.append(s + ':')
    def c(self, s): self.l.append('    ; ' + s)
    def txt(self): return '\n'.join(self.l) + '\n'
def vr(b, n=1): return f'v{b}' if n == 1 else f'v[{b}:{b+n-1}]'

A0 = 128; H0 = 96; BI0 = 64; BF0 = 32; D0 = 16; P0 = 8; BA0 = 4
def A(t, s): return vr(A0 + 16*t + 4*s, 4)
def BI(t): return vr(BI0 + 4*t, 4)
def BF(buf, s): return vr(BF0 + 16*buf + 4*s, 4)
def D(i): return vr(D0 + 4*i, 4)

STAMP0 = 84
class Stamps:
    def __init__(self, e, on): self.e = e; self.on = on
    def __call__(self, name, idx):
        if self.on: self.e(f's_memrealtime s[{STAMP0+2*idx}:{STAMP0+2*idx+1}]')

def prep_load(e, E, X, I, R, tmp):
    t0, t1, t2 = tmp, tmp+1, tmp+2
    e(f'v_mul_hi_u32 v{t0}, v{E}, s41')
    e(f'v_lshlrev_b32 v{t2}, 2, v{E}')
    e(f'v_mul_u32_u24 v{t1}, 26, v{t0}')
    e(f'v_mul_u32_u24 v{t0}, 104, v{t0}')
    e(f'v_sub_u32 v{I}, v{E}, v{t1}')
    e(f'buffer_load_dword v{X}, v{t2}, s[56:59], 0 offen')
    for q in range(6): e(f'buffer_load_dwordx4 {vr(R+4*q,4)}, v{t0}, s[56:59], 0 offen offset:{16*q}')
    e(f'buffer_load_dwordx2 {vr(R+24,2)}, v{t0}, s[56:59], 0 offen offset:96')

def prep_calc(e, X, I, R, tmp):
    t0, t1 = tmp, tmp+1
    e(f'v_and_b32 v{t0}, 3, v{X}')
    e(f'v_mul_u32_u24 v{t0}, 2052, v{t0}')
    e(f'v_add_u32 v{t0}, {R_BASE}, v{t0}')
    def m(j): return f's[{64 + 2*(j % 4)}:{65 + 2*(j % 4)}]'
    for j in range(2): e(f'v_cmp_le_u32 {m(j)}, {j}, v{I}')
    for j in range(26):
        y = R + j
        if j + 2 < 26: e(f'v_cmp_le_u32 {m(j+2)}, {j+2}, v{I}')
        e(f'v_subb_co_u32 v{y}, vcc, v{y}, v{X}, {m(j)}')
        e(f'v_add_u32 v{t1}, s42, v{y}')
        e(f'v_min_u32 v{y}, v{y}, v{t1}')
        e(f'v_addc_co_u32 v{y}, vcc, 0, v{y}, {m(j)}')
        e(f'v_min_u32 v{y}, s43, v{y}')
        e(f'v_lshl_add_u32 v{y}, v{y}, 2, v{t0}')

def lookup_issue(e, R, lo, hi):
    for j in range(lo, hi): e(f'ds_read_b32 v{R+j}, v{R+j}')

def lookup_calc(e, R, Et, out):
    for j in range(26): e(f'v_lshlrev_b32 v{Et+j}, 16, v{R+j}')
    m = out
    e(f'v_max3_f32 v{m}, v{Et}, v{Et+1}, s45')
    for j in range(2, 26, 2): e(f'v_max3_f32 v{m}, v{m}, v{Et+j}, v{Et+j+1}')
    for j in range(26): e(f'v_sub_f32 v{Et+j}, v{Et+j}, v{m}')
    for j in range(26):
        e(f'v_exp_f32 v{Et+j}, v{Et+j}')
        e(f'v_and_b32 v{R+j}, 0xffff0000, v{R+j}')
    e(f'v_add_f32 v{out+1}, v{Et}, v{Et+1}')
    e(f'v_mul_f32 v{out+2}, v{Et}, v{R}')
    e(f'v_fmac_f32 v{out+2}, v{Et+1}, v{R+1}')
    for j in range(2, 26):
        e(f'v_add_f32 v{out+1}, v{out+1}, v{Et+j}')
        e(f'v_fmac_f32 v{out+2}, v{Et+j}, v{R+j}')
    e(f'v_mov_b32 v{out+3}, 0')

def lds_poll4(e, lab, areg, off, tmp=16):
    e.lab(lab)
    e(f'ds_read_b128 {vr(tmp,4)}, v{areg} offset:{off}')
    e('s_waitcnt lgkmcnt(0)')
    e(f'v_add3_u32 v{tmp}, v{tmp}, v{tmp+1}, v{tmp+2}')
    e(f'v_add_u32 v{tmp}, v{tmp}, v{tmp+3}')
    e('s_nop 0')
    e(f'v_readfirstlane_b32 s46, v{tmp}')
    e('s_cmp_lg_u32 s46, 4')
    e(f's_cbranch_scc1 {lab}')

def producer(e, N, st):
    CNTP, IMG = 0, 1024
    e.lab(f'{N}_prod')
    e.c('producer: bin elements [PCH*p, ...) by owner = idx>>2')
    e('s_lshl_b32 s46, s3, 6')
    e('v_add_u32 v1, s46, v0')
    e('v_lshlrev_b32 v2, 4, v1')
    e('v_lshlrev_b32 v3, 2, v1')
    e('v_mov_b32 v4, 0')
    e('s_cmp_ge_u32 s3, 4')
    e(f's_cbranch_scc1 {N}_pz')
    e('ds_write_b32 v3, v4')
    e.lab(f'{N}_pz')
    e('s_waitcnt lgkmcnt(0)')
    e('s_mov_b32 s56, s52'); e('s_mov_b32 s57, s53'); e(f's_mov_b32 s58, {NEL*4}'); e('s_mov_b32 s59, 0x00020000')
    e(f's_mul_i32 s60, s2, {PCH*4}')
    for q in range(9):
        e(f'buffer_load_dwordx4 {vr(16+4*q,4)}, v2, s[56:59], s60 offen')
        if q < 8: e('s_add_u32 s60, s60, 8192')
    e(f's_mov_b32 s61, {PCH}')
    e('s_cmp_eq_u32 s2, 5')
    e(f's_cselect_b32 s61, {NEL - 5*PCH}, s61')
    e('v_mov_b32 v5, 1')
    e('v_mov_b32 v6, 1000')
    e('s_barrier')
    RK = 60
    def atom(q):
        e(f's_waitcnt vmcnt({8-q})')
        for k in range(4):
            x = 16 + 4*q + k
            if q == 8:
                e(f'v_add_u32 v8, {16384 + k}, v3')
                e('v_cmp_gt_u32 vcc, s61, v8')
                e('s_nop 1')
                e(f'v_cndmask_b32 v{x}, v6, v{x}, vcc')
            e(f'v_and_b32 v{68 + 4*(q%2) + k}, -4, v{x}')
            e(f'ds_add_rtn_u32 v{RK + 4*(q%2) + k}, v{68 + 4*(q%2) + k}, v5')
    def wr(q):
        for k in range(4):
            r = RK + 4*(q%2) + k; a = 68 + 4*(q%2) + k
            e(f'v_min_u32 v{r}, 126, v{r}')
            e(f'v_lshlrev_b32 v{a}, 6, v{a}')
            e(f'v_lshl_add_u32 v{a}, v{r}, 1, v{a}')
            e(f'v_add_u32 v{r}, {2048*q + k}, v3')
            e(f'ds_write_b16 v{a}, v{r} offset:{IMG + 2}')
    atom(0)
    for q in range(1, 9):
        atom(q)
        e(f's_waitcnt lgkmcnt({4 if q == 1 else 8})')
        wr(q-1)
    e('s_waitcnt lgkmcnt(4)')
    wr(8)
    e('s_waitcnt lgkmcnt(0)')
    e('s_barrier')
    e('s_cmp_ge_u32 s3, 4')
    e(f's_cbranch_scc1 {N}_pc')
    e('ds_read_b32 v8, v3')
    e('v_lshlrev_b32 v9, 8, v1')
    e('s_waitcnt lgkmcnt(0)')
    e(f'ds_write_b16 v9, v8 offset:{IMG}')
    e('s_waitcnt lgkmcnt(0)')
    e.lab(f'{N}_pc')
    e('s_barrier')
    e('s_mov_b32 s36, s6'); e('s_mov_b32 s37, s7')
    e(f's_mul_i32 s60, s2, {BUCK_P}')
    e(f's_add_u32 s60, s60, {BUCK_OFF}')
    e('s_mov_b32 s38, 0x10000000')
    e('s_mov_b32 s39, 0x00020000')
    for r in range(8): e(f'ds_read_b128 {vr(16+4*r,4)}, v2 offset:{IMG + 8192*r}') if IMG + 8192*r < 65536 else None
    for r in range(8):
        e(f's_waitcnt lgkmcnt({7-r})')
        e(f'buffer_store_dwordx4 {vr(16+4*r,4)}, v2, s[36:39], s60 offen sc1')
        if r < 7: e('s_add_u32 s60, s60, 8192')
    e('s_waitcnt vmcnt(0)')
    e('s_barrier')
    e('s_cmp_lg_u32 s3, 0')
    e(f's_cbranch_scc1 {N}_end')
    e('s_load_dwordx2 s[8:9], s[0:1], 72')
    e('s_waitcnt lgkmcnt(0)')
    e('s_mov_b32 s10, 256'); e('s_mov_b32 s11, 0x00020000')
    e('v_mov_b32 v8, 0')
    e('s_mov_b64 exec, 1')
    e('buffer_atomic_add v5, v8, s[8:11], 0 offen')
    e('s_mov_b64 exec, -1')
    e(f's_branch {N}_end')

def k1(name, stamps=False):
    e = Em(); N = name; st = Stamps(e, stamps)
    e.l.append(f'.p2align 8\n.type {name},@function\n{name}:')
    e('s_cmp_ge_u32 s2, 256')
    e(f's_cbranch_scc1 {N}_done')
    st('start', 0)
    e('s_load_dwordx2 s[4:5], s[0:1], 8')
    e('s_load_dwordx8 s[8:15], s[0:1], 32')
    e('s_load_dwordx2 s[6:7], s[0:1], 80')
    e('s_load_dwordx2 s[52:53], s[0:1], 0')
    e('v_lshrrev_b32 v1, 6, v0')
    e('v_and_b32 v0, 63, v0')
    e('v_readfirstlane_b32 s3, v1')
    e(f's_cmp_lt_u32 s2, {NPROD}')
    e(f's_cbranch_scc1 {N}_prod')
    e(f's_sub_u32 s40, s2, {NPROD}')
    e('s_lshl_b32 s40, s40, 2')
    e('v_lshrrev_b32 v2, 4, v0')
    e('v_and_b32 v3, 15, v0')
    e('v_lshlrev_b32 v4, 1, v2')
    e('v_xor_b32 v4, v3, v4')
    e('v_lshlrev_b32 v4, 4, v4')
    e('v_lshl_add_u32 v4, v2, 8, v4')
    e('v_xor_b32 v5, 128, v4')
    e('s_lshl_b32 s41, s3, 12')
    e(f's_add_u32 s44, s41, {X_BASE}')
    e('s_waitcnt lgkmcnt(0)')
    e('s_mov_b32 s20, s8'); e('s_mov_b32 s21, s9'); e('s_mov_b32 s22, 32768'); e('s_mov_b32 s23, 0x00020000')
    e('s_cmp_lg_u32 s3, 4')
    e(f's_cbranch_scc1 {N}_nosmall')
    e('s_mov_b32 s24, s10'); e('s_mov_b32 s25, s11'); e('s_mov_b32 s26, 256'); e('s_mov_b32 s27, 0x00020000')
    e('s_mov_b32 s28, s12'); e('s_mov_b32 s29, s13'); e('s_mov_b32 s30, 256'); e('s_mov_b32 s31, 0x00020000')
    e('s_mov_b32 s32, s14'); e('s_mov_b32 s33, s15'); e('s_mov_b32 s34, 256'); e('s_mov_b32 s35, 0x00020000')
    e('v_lshlrev_b32 v9, 4, v0')
    e('s_mov_b64 exec, 0xffff')
    e(f's_mov_b32 m0, {S_H}'); e('s_nop 0')
    e('buffer_load_dwordx4 v9, s[28:31], 0 offen lds')
    e(f's_mov_b32 m0, {S_B}'); e('s_nop 0')
    e('buffer_load_dwordx4 v9, s[24:27], 0 offen lds')
    e(f's_mov_b32 m0, {S_P}'); e('s_nop 0')
    e('buffer_load_dwordx4 v9, s[32:35], 0 offen lds')
    e('s_mov_b64 exec, -1')
    e.lab(f'{N}_nosmall')
    for k in range(4):
        e(f's_add_u32 m0, s44, {1024*k}')
        e(f's_add_u32 s46, s41, {1024*k}')
        e(f'buffer_load_dwordx4 {"v4" if k < 2 else "v5"}, s[20:23], s46 offen lds')
    e('s_cmp_ge_u32 s3, 4')
    e(f's_cbranch_scc1 {N}_helper')

    e.c('compute wave')
    e('s_cmp_lg_u32 s3, 0')
    e(f's_cbranch_scc1 {N}_noinit')
    e('v_lshlrev_b32 v9, 2, v0')
    e(f'v_add_u32 v9, {FLAG_T}, v9')
    e('v_mov_b32 v10, 0')
    e(f'v_mov_b32 v11, {DUMMY_VAL:#x}')
    e(f'v_cmp_eq_u32 vcc, {(DUMMY - FLAG_T)//4}, v0')
    e('s_nop 1')
    e('v_cndmask_b32 v10, v10, v11, vcc')
    e('s_mov_b64 exec, 0x1ffffff')
    e('ds_write_b32 v9, v10')
    e('s_mov_b64 exec, -1')
    e.lab(f'{N}_noinit')
    assert (DUMMY - FLAG_T)//4 == 24
    e('v_lshrrev_b32 v8, 2, v3')
    e('v_and_b32 v9, 3, v3')
    e('v_lshl_add_u32 v10, v2, 3, v8')
    e('v_lshlrev_b32 v10, 8, v10')
    e('v_lshl_add_u32 v10, v9, 3, v10')
    e('v_and_b32 v11, 1, v2')
    e('v_lshl_add_u32 v11, v11, 2, v8')
    e('v_lshl_add_u32 v10, v11, 5, v10')
    e(f'v_add_u32 v4, {X_BASE}, v10')
    for t in range(1, 8): e(f'v_xor_b32 v{4+t}, {32*t}, v4')
    e('v_xor_b32 v12, s3, v2')
    e('v_lshlrev_b32 v12, 4, v12')
    e('s_lshl_b32 s46, s3, 8')
    e('v_add_u32 v12, s46, v12')
    e('v_and_b32 v13, 1, v0')
    e('v_lshlrev_b32 v13, 4, v13')
    e('v_mov_b32 v14, 0xffff')
    e('v_lshlrev_b32 v13, v13, v14')
    e('v_and_b32 v14, 2, v0')
    e('v_cmp_eq_u32 vcc, 0, v14')
    e('v_mov_b32 v15, 0')
    e(f'v_lshlrev_b32 v1, 3, v2')
    e('v_cndmask_b32 v14, v15, v13, vcc')
    e('v_cndmask_b32 v13, v13, v15, vcc')
    e(f'v_add_u32 v1, {S_H}, v1')
    e('s_waitcnt vmcnt(0) lgkmcnt(0)')
    st('preB1', 1)
    e('s_barrier')
    st('B1', 2)
    for s in range(4):
        if s == 0: e(f'ds_read_b128 {vr(32,4)}, v12')
        else:
            e(f'v_xor_b32 v15, {64*s}, v12')
            e(f'ds_read_b128 {vr(32+4*s,4)}, v15')
    HP = A0 + 96; BP = A0 + 112
    for t in range(8): e(f'ds_read_b64 {vr(HP+2*t,2)}, v1 offset:{32*t}')
    e('s_waitcnt lgkmcnt(8)')
    for s in range(4):
        for q in range(2):
            e(f'v_and_b32 v{32+4*s+2*q}, v{32+4*s+2*q}, v14')
            e(f'v_and_b32 v{32+4*s+2*q+1}, v{32+4*s+2*q+1}, v13')
    for t in range(7): e(f'ds_read_b64 {vr(BP+2*t,2)}, v1 offset:{256+32*t}')
    e('s_waitcnt lgkmcnt(7)')
    e(f'ds_read_b64 {vr(BP+14,2)}, v1 offset:{256+32*7}')
    def trread(k):
        t, s, q = k >> 3, (k >> 1) & 3, k & 1
        e(f'ds_read_b64_tr_b16 {vr(48 + 2*(k % 8), 2)}, v{4+t} offset:{8192*s + 1024*q}')
    for t in range(8):
        for q in range(2):
            e(f'v_lshlrev_b32 v{H0+4*t+2*q}, 16, v{HP+2*t+q}')
            e(f'v_and_b32 v{H0+4*t+2*q+1}, 0xffff0000, v{HP+2*t+q}')
    e('s_waitcnt lgkmcnt(0)')
    for k in range(8): trread(k)
    for t in range(8):
        for q in range(2):
            e(f'v_lshlrev_b32 v{BI0+4*t+2*q}, 16, v{BP+2*t+q}')
            e(f'v_and_b32 v{BI0+4*t+2*q+1}, 0xffff0000, v{BP+2*t+q}')
    def cvts(k):
        t, s, q = k >> 3, (k >> 1) & 3, k & 1
        d = 16 + 4*(k % 4)
        a = A0 + 16*t + 4*s + 2*q
        e(f'v_cvt_pk_bf16_f32 v{a}, v{d}, v{d+1}')
        e(f'v_cvt_pk_bf16_f32 v{a+1}, v{d+2}, v{d+3}')
    for k in range(64):
        t, s, q = k >> 3, (k >> 1) & 3, k & 1
        if k % 4 == 0:
            rem = min(64 - k, 8) - 4
            e(f's_waitcnt lgkmcnt({rem})')
        e(f'v_mfma_f32_4x4x4_16b_bf16 {vr(16 + 4*(k % 4), 4)}, {vr(32+4*s+2*q, 2)}, {vr(48 + 2*(k % 8), 2)}, 0')
        if k == 3: e('s_nop 1')
        if k >= 3: cvts(k - 3)
        if k % 4 == 3:
            for kk in range(k + 5, min(k + 9, 64)): trread(kk)
    e('s_nop 2')
    cvts(61); cvts(62); e('s_nop 0'); cvts(63)
    e('v_xor_b32 v4, v2, v3')
    e('v_lshlrev_b32 v4, 4, v4')
    e('v_lshl_add_u32 v4, v3, 8, v4')
    for s in range(1, 4): e(f'v_xor_b32 v{BA0+s}, {64*s}, v4')
    e('s_lshl_b32 s46, s3, 11')
    e(f's_add_u32 s46, s46, {R_BASE - 256}')
    e('v_lshlrev_b32 v1, 2, v0')
    e('v_add_u32 v1, s46, v1')
    e(f'v_mov_b32 v3, {FLAG_T}')
    st('formed', 3)
    e('s_barrier')
    st('B2', 4)
    for s in range(4): e(f'ds_read_b128 {BF(0,s)}, v{BA0+s}')
    e('s_mov_b32 s47, 0')
    e.lab(f'{N}_loop')
    e('s_cmp_lg_u32 s47, 2')
    e(f's_cbranch_scc1 {N}_nopoll')
    lds_poll4(e, f'{N}_poll', 3, 0, tmp=12)
    e.lab(f'{N}_nopoll')
    def fma(C, r):
        Cm = C % 32
        j, t = Cm >> 3, Cm & 7
        d = D0 + 4*(Cm % 4) + r
        if t == 0 and r == 0: e(f'v_mul_f32 v{P0+j}, |v{d}|, v{H0+4*t+r}')
        else: e(f'v_fma_f32 v{P0+j}, |v{d}|, v{H0+4*t+r}, v{P0+j}')
    for m in range(128):
        j, t, s = m >> 5, (m >> 2) & 7, m & 3
        C = m >> 2
        if m % 32 == 0: e('s_waitcnt lgkmcnt(0)')
        c_in = BI(t) if s == 0 else D(C % 4)
        e(f'v_mfma_f32_16x16x32_bf16 {D(C % 4)}, {A(t,s)}, {BF(j & 1, s)}, {c_in}')
        fma(C - 2, s)
        mt = m & 31
        if mt in (1, 5, 9, 13):
            sn = mt >> 2
            e(f'ds_read_b128 {BF((j+1) & 1, sn)}, v{BA0+sn} offset:{4096*(j+1)}')
        if m == 9: e(f'v_permlane16_swap_b32 v{P0+2}, v{P0+3}')
        if m == 10: e(f'v_add_f32 v{P0+2}, v{P0+2}, v{P0+3}')
        if m == 12: e(f'v_permlane32_swap_b32 v2, v{P0+2}')
        if m == 13: e(f'v_add_f32 v2, v2, v{P0+2}')
        if m == 14: e('ds_write_b32 v1, v2')
        if m == 15: e('v_add_u32 v1, 256, v1')
        if m == 73: e(f'v_permlane16_swap_b32 v{P0}, v{P0+1}')
        if m == 74: e(f'v_add_f32 v2, v{P0}, v{P0+1}')
        if m >= 113 and m < 117:
            e(f'v_add_u32 v{BA0 + m - 113}, 16384, v{BA0 + m - 113}')
    e('s_add_u32 s47, s47, 1')
    e('s_cmp_lt_u32 s47, 8')
    e(f's_cbranch_scc1 {N}_loop')
    e('s_nop 7')
    for C in (30, 31):
        for r in range(4): fma(C, r)
    e('s_nop 1')
    e(f'v_permlane16_swap_b32 v{P0+2}, v{P0+3}')
    e(f'v_add_f32 v{P0+2}, v{P0+2}, v{P0+3}')
    e('s_nop 1')
    e(f'v_permlane32_swap_b32 v2, v{P0+2}')
    e(f'v_add_f32 v2, v2, v{P0+2}')
    e('ds_write_b32 v1, v2')
    st('mainend', 5)
    e(f's_branch {N}_fin')

    e.lab(f'{N}_helper')
    e.c('helper wave; hw = wave-4 in s50')
    e('s_sub_u32 s50, s3, 4')
    e('s_mov_b32 s16, s4'); e('s_mov_b32 s17, s5'); e('s_mov_b32 s18, 256000'); e('s_mov_b32 s19, 0x00020000')
    e('s_lshl_b32 s42, s50, 2')
    e('v_add_u32 v6, s42, v2')
    e('v_xor_b32 v7, v3, v6')
    e('v_lshlrev_b32 v7, 4, v7')
    e('v_lshl_add_u32 v120, v2, 8, v7')
    e('s_add_u32 s48, s40, s42')
    e('s_lshl_b32 s44, s50, 10')
    def tpiece(m):
        if m > 0: e('s_add_u32 s48, s48, 16')
        e('s_cmp_ge_u32 s48, 1000')
        e('s_cselect_b32 s46, 1000, 0')
        e('s_sub_u32 s48, s48, s46')
        e(f's_add_u32 m0, s44, {4096*m}')
        e('s_lshl_b32 s46, s48, 8')
        e('buffer_load_dwordx4 v120, s[16:19], s46 offen lds')
    for m in range(4): tpiece(m)
    e('v_lshrrev_b32 v8, 2, v3')
    e('v_and_b32 v9, 3, v3')
    e('v_lshl_add_u32 v8, v8, 3, v9')
    e('v_and_b32 v9, 7, v3')
    e('v_lshlrev_b32 v9, 1, v9')
    e('v_xor_b32 v9, v9, v2')
    e('v_lshlrev_b32 v9, 4, v9')
    e('v_lshl_add_u32 v8, v8, 8, v9')
    e('s_lshl_b32 s46, s50, 13')
    e(f's_add_u32 s46, s46, {X_BASE}')
    e('v_add_u32 v4, s46, v8')
    for k in range(1, 4): e(f'v_xor_b32 v{4+k}, {64*k}, v4')
    e('v_lshrrev_b32 v8, 2, v3')
    e('v_add_u32 v9, s42, v2')
    e('v_xor_b32 v9, v9, v8')
    e('v_lshlrev_b32 v9, 4, v9')
    e('v_lshl_add_u32 v12, v8, 8, v9')
    e('v_lshlrev_b32 v10, 4, v2')
    e(f'v_add_u32 v10, {S_H}, v10')
    e('s_lshl_b32 s46, s50, 6')
    e('v_add_u32 v11, s46, v10')
    e('v_lshlrev_b32 v15, 2, v0')
    e(f'v_add_u32 v15, {S_H}, v15')
    e('v_and_b32 v8, 3, v3')
    e(f'v_mov_b32 v9, {f2u(C_LIN):#x}')
    e('v_mov_b32 v16, 0')
    e('v_cmp_eq_u32 vcc, 0, v8')
    e('v_mov_b32 v17, -1')
    e('s_nop 0')
    e('v_cndmask_b32 v13, v16, v9, vcc')
    e('v_cmp_eq_u32 vcc, 1, v8')
    e('s_nop 1')
    e('v_cndmask_b32 v14, v16, v17, vcc')
    e('s_waitcnt vmcnt(3)')
    e('s_barrier')
    for half in range(2):
        for k in range(4):
            e(f'ds_read_b128 {vr(160 + 16*half + 4*k, 4)}, v{4+k} offset:{1024*half}')
    for k in range(4): e(f'ds_read_b128 {vr(32+4*k,4)}, v10 offset:{64*k}')
    for m in range(4, 9): tpiece(m)
    e('s_waitcnt lgkmcnt(4)')
    e('ds_read_b128 v[48:51], v11 offset:512')
    e('ds_read_b128 v[52:55], v12')
    e('ds_read_b32 v64, v15')
    e('ds_read_b32 v65, v15 offset:256')
    e('s_waitcnt vmcnt(0) lgkmcnt(0)')
    e('s_barrier')
    for m in range(9, 31): tpiece(m)
    e('s_cmp_ge_u32 s50, 2')
    e(f's_cbranch_scc1 {N}_nolast')
    tpiece(31)
    e.lab(f'{N}_nolast')
    for half in range(2):
        dd = vr(128 + 4*half, 4)
        for k in range(4):
            cin = '0' if k == 0 else dd
            e(f'v_mfma_f32_16x16x32_bf16 {dd}, {vr(160 + 16*half + 4*k, 4)}, {vr(32+4*k,4)}, {cin}')
    e('v_lshlrev_b32 v66, 16, v64'); e('v_and_b32 v67, 0xffff0000, v64')
    e('v_lshlrev_b32 v68, 16, v65'); e('v_and_b32 v69, 0xffff0000, v65')
    e('v_mul_f32 v66, v66, |v68|')
    e('v_fma_f32 v66, v67, |v69|, v66')
    for mode in ['row_ror:8 row_mask:0xf', 'row_ror:4 row_mask:0xf', 'row_ror:2 row_mask:0xf', 'row_ror:1 row_mask:0xf', 'row_bcast:15 row_mask:0xa', 'row_bcast:31 row_mask:0xc']:
        e('s_nop 1'); e(f'v_add_f32_dpp v66, v66, v66 {mode} bank_mask:0xf')
    e('s_nop 1')
    e('v_readlane_b32 s48, v66, 63')
    e(f's_mov_b32 s49, {f2u(-C_LIN):#x}')
    for i in range(4): e(f'v_and_b32 v{48+i}, v{48+i}, v14')
    e('v_mov_b32 v70, s49')
    e('v_mul_f32 v100, s48, v70')
    e('v_mov_b32 v101, 0'); e('v_mov_b32 v102, 0'); e('v_mov_b32 v103, 0')
    for jj in range(0, 8, 2):
        g0 = 128 + jj; pp = 48 + jj//2; tt = 52 + jj//2
        e(f'v_lshlrev_b32 v16, 16, v{pp}'); e(f'v_and_b32 v17, 0xffff0000, v{pp}')
        e(f'v_fma_f32 v16, v{g0}, v13, v16'); e(f'v_fma_f32 v17, v{g0+1}, v13, v17')
        e(f'v_lshlrev_b32 v18, 16, v{tt}'); e(f'v_and_b32 v19, 0xffff0000, v{tt}')
        e('v_mul_f32 v16, v16, v18'); e('v_mul_f32 v17, v17, v19')
        e(f'v_cvt_pk_bf16_f32 v{72 + jj//2}, v16, v17')
    e('v_lshlrev_b32 v8, 4, v0')
    e(f'v_add_u32 v8, {AFR}, v8')
    e('v_add_u32 v9, s44, v8')
    e('ds_write_b128 v9, v[72:75]')
    e('s_lshl_b32 s46, s50, 2')
    e(f's_add_u32 s46, s46, {FLAG_A}')
    e('v_mov_b32 v10, s46')
    e('v_mov_b32 v11, 1')
    e('s_waitcnt lgkmcnt(0)')
    e('ds_write_b32 v10, v11')
    e('v_add_u32 v21, -16, v10')
    e('s_waitcnt vmcnt(0)')
    e('ds_write_b32 v21, v11')
    e(f'v_mov_b32 v12, {FLAG_T}')
    lds_poll4(e, f'{N}_pollA', 12, 16)
    for s in range(4): e(f'ds_read_b128 {vr(72+4*s,4)}, v8 offset:{1024*s}')
    e('v_xor_b32 v4, v2, v3')
    e('v_lshlrev_b32 v4, 4, v4')
    e('v_lshl_add_u32 v4, v3, 8, v4')
    e('s_lshl_b32 s51, s50, 12')
    e('v_add_u32 v4, s51, v4')
    for s in range(1, 4): e(f'v_xor_b32 v{4+s}, {64*s}, v4')
    e('v_lshlrev_b32 v8, 12, v2')
    e('v_lshl_add_u32 v8, v3, 3, v8')
    e('s_lshl_b32 s51, s50, 7')
    e(f's_add_u32 s51, s51, {LS_BASE}')
    e('v_add_u32 v8, s51, v8')
    for s in range(4): e(f'v_add_u32 v{20+s}, 65536, v{4+s}')
    lds_poll4(e, f'{N}_pollT', 12, 0)
    st('hTland', 1)
    for i in range(8):
        buf = 160 + 16*(i & 1)
        def rd(ii):
            b2 = 160 + 16*(ii & 1)
            base = 4 if ii < 4 else 20
            for s in range(4): e(f'ds_read_b128 {vr(b2+4*s,4)}, v{base+s} offset:{16384*(ii % 4)}')
        if i == 0: rd(0)
        e('s_waitcnt lgkmcnt(0)')
        dd = vr(192 + 4*(i & 1), 4)
        for s in range(4):
            cin = vr(100,4) if s == 0 else dd
            e(f'v_mfma_f32_16x16x32_bf16 {dd}, {vr(72+4*s,4)}, {vr(buf+4*s,4)}, {cin}')
        if i < 7: rd(i+1)
        e('s_nop 4' if i < 7 else 's_nop 7')
        e(f'ds_write_b64 v8, {vr(192 + 4*(i & 1), 2)} offset:{512*i}')
    st('hLS', 3)
    e('s_mov_b32 s56, s52'); e('s_mov_b32 s57, s53'); e(f's_mov_b32 s58, {NEL*4}'); e('s_mov_b32 s59, 0x00020000')
    e('s_mov_b32 s36, s6'); e('s_mov_b32 s37, s7'); e('s_mov_b32 s38, 0x10000000'); e('s_mov_b32 s39, 0x00020000')
    e('s_mov_b32 s41, 165191050'); e('s_movk_i32 s42, 1000'); e('s_movk_i32 s43, 501'); e(f's_mov_b32 s45, {NEG_BIG:#x}')
    e('v_lshlrev_b32 v89, 4, v0')
    e('v_lshlrev_b32 v91, 2, v0')
    e('s_cmp_lg_u32 s50, 0')
    e(f's_cbranch_scc1 {N}_waitI')
    e('s_load_dwordx2 s[60:61], s[0:1], 72')
    e('s_waitcnt lgkmcnt(0)')
    e('s_mov_b32 s62, 256'); e('s_mov_b32 s63, 0x00020000')
    e('v_mov_b32 v16, 0')
    e('s_mov_b32 s51, 0')
    e('s_mov_b32 s49, 2')
    e.lab(f'{N}_pollG')
    e('buffer_load_dword v17, v16, s[60:63], 0 offen sc1')
    e('s_waitcnt vmcnt(0)')
    e('v_readfirstlane_b32 s46, v17')
    e(f's_cmp_eq_u32 s46, {NPROD}')
    e(f's_cbranch_scc1 {N}_gotG')
    e('s_add_u32 s51, s51, 1')
    e('s_cmp_lt_u32 s51, 4096')
    e(f's_cbranch_scc1 {N}_pollG')
    e(f's_branch {N}_pubI')
    e.lab(f'{N}_gotG')
    e('s_lshr_b32 s46, s40, 2')
    e('s_lshl_b32 s46, s46, 8')
    e(f's_add_u32 s46, s46, {BUCK_OFF}')
    for p in range(NPROD):
        e(f'buffer_load_dword v{24+p}, v91, s[36:39], s46 offen sc1')
        if p < NPROD-1: e(f's_add_u32 s46, s46, {BUCK_P}')
    e(f'v_add_u32 v16, {STG}, v91')
    e('s_waitcnt vmcnt(0)')
    for p in range(NPROD): e(f'ds_write_b32 v16, v{24+p} offset:{256*p}')
    for p in range(NPROD): e(f'v_readfirstlane_b32 s{64+p}, v{24+p}')
    e('s_mov_b32 s49, 1')
    e('s_mov_b32 s70, 0')
    e('v_mov_b32 v17, 0')
    for p in range(NPROD):
        e(f's_and_b32 s{64+p}, s{64+p}, 0xffff')
        e(f's_cmp_gt_u32 s{64+p}, 127')
        e('s_cselect_b32 s49, 2, s49')
        e(f'v_writelane_b32 v17, s70, {p}')
        e(f's_add_u32 s70, s70, s{64+p}')
    e(f'v_writelane_b32 v17, s70, {NPROD}')
    e('s_cmp_gt_u32 s70, 512')
    e('s_cselect_b32 s49, 2, s49')
    e(f'v_add_u32 v18, {PFX}, v91')
    e('s_mov_b64 exec, 0x7f')
    e('ds_write_b32 v18, v17')
    e('s_mov_b64 exec, -1')
    e.lab(f'{N}_pubI')
    e('v_mov_b32 v17, s49')
    e('s_waitcnt lgkmcnt(0)')
    e('ds_write_b32 v12, v17 offset:32')
    e.lab(f'{N}_waitI')
    e('ds_read_b32 v16, v12 offset:32')
    e('s_waitcnt lgkmcnt(0)')
    e('v_readfirstlane_b32 s49, v16')
    e('s_cmp_eq_u32 s49, 0')
    e(f's_cbranch_scc1 {N}_waitI')
    st('hitems', 5)
    e('s_cmp_lg_u32 s49, 1')
    e(f's_cbranch_scc1 {N}_hskip')
    e('ds_read_b128 v[16:19], v12 offset:48')
    e('ds_read_b128 v[20:23], v12 offset:64')
    e('s_waitcnt lgkmcnt(0)')
    for p in range(1, 7): e(f'v_readfirstlane_b32 s{64+p}, v{16+p}')
    e('s_lshl_b32 s46, s50, 7')
    for beta in range(2):
        vi = 24 + beta; vp = 26 + beta; va = 28 + beta
        e(f'v_add_u32 v{vi}, s46, v0')
        if beta == 1: e(f'v_add_u32 v{vi}, 64, v{vi}')
        e(f'v_mov_b32 v{vp}, 0')
        for p in range(1, 6): e(f'v_cmp_le_u32 s[{70+2*p}:{71+2*p}], s{64+p}, v{vi}')
        for p in range(1, 6): e(f'v_addc_co_u32 v{vp}, vcc, 0, v{vp}, s[{70+2*p}:{71+2*p}]')
        e(f'v_lshlrev_b32 v{va}, 2, v{vp}')
        e(f'ds_read_b32 v{30+beta}, v{va} offset:0') if False else None
        e(f'v_add_u32 v{va}, {PFX}, v{va}')
        e(f'ds_read_b32 v{30+beta}, v{va}')
        e(f'v_cmp_gt_u32 s[{82 if beta else 54}:{83 if beta else 55}], s70, v{vi}')
    e('s_waitcnt lgkmcnt(0)')
    VM = ['s[54:55]', 's[82:83]']
    for beta in range(2):
        vi = 24 + beta; vp = 26 + beta; va = 28 + beta
        e(f'v_sub_u32 v{va}, v{vi}, v{30+beta}')
        e(f'v_lshlrev_b32 v{va}, 1, v{va}')
        e(f'v_lshl_add_u32 v{va}, v{vp}, 8, v{va}')
        e(f'v_cndmask_b32 v{va}, 0, v{va}, {VM[beta]}')
        e(f'v_add_u32 v{va}, {STG + 2}, v{va}')
        e(f'ds_read_u16 v{30+beta}, v{va}')
    e(f's_mov_b32 s46, {PCH}')
    e('s_waitcnt lgkmcnt(0)')
    for beta in range(2):
        e(f'v_mad_u32_u24 v{104+beta}, v{26+beta}, s46, v{30+beta}')
        e(f'v_cndmask_b32 v{104+beta}, 0, v{104+beta}, {VM[beta]}')
    RB = [128, 160]
    for beta in range(2): prep_load(e, 104+beta, 106+beta, 108+beta, RB[beta], 112)
    e('s_waitcnt vmcnt(8)')
    prep_calc(e, 106, 108, RB[0], 112)
    e('s_waitcnt vmcnt(0)')
    prep_calc(e, 107, 109, RB[1], 112)
    e.lab(f'{N}_hskip')
    st('hprep', 2)

    e.lab(f'{N}_fin')
    e('s_waitcnt lgkmcnt(0)')
    e('s_barrier')
    st('B3', 6)
    e('s_lshl_b32 s46, s3, 6')
    e('v_add_u32 v1, s46, v0')
    e('v_lshlrev_b32 v2, 4, v1')
    e(f'v_add_u32 v3, {R_BASE}, v2')
    e('v_lshlrev_b32 v4, 5, v1')
    e(f'v_add_u32 v4, {LS_BASE}, v4')
    e('ds_read_b128 v[8:11], v3')
    e('ds_read_b128 v[12:15], v4')
    e('ds_read_b128 v[16:19], v4 offset:16')
    e('s_mov_b32 s47, 501')
    e('s_cmp_ge_u32 s40, 500')
    e('s_cselect_b32 s47, 500, s47')
    e('v_lshrrev_b32 v5, 7, v1')
    e('v_add_u32 v5, s47, v5')
    e('v_and_b32 v6, 127, v1')
    e('v_lshlrev_b32 v6, 2, v6')
    e('v_sub_u32 v5, v5, v6')
    e(f'v_mov_b32 v7, {DUMMY_VAL:#x}')
    e(f's_mov_b32 s46, {f2u(C_LIN):#x}')
    for k in range(4): e(f'v_cmp_ge_i32 s[{64+2*k}:{65+2*k}], {k}, v5')
    e('s_waitcnt lgkmcnt(0)')
    e('v_fma_f32 v8, v8, s46, v12'); e('v_fma_f32 v9, v9, s46, v14')
    e('v_fma_f32 v10, v10, s46, v16'); e('v_fma_f32 v11, v11, s46, v18')
    e('v_cvt_pk_bf16_f32 v8, v8, v13'); e('v_cvt_pk_bf16_f32 v9, v9, v15')
    e('v_cvt_pk_bf16_f32 v10, v10, v17'); e('v_cvt_pk_bf16_f32 v11, v11, v19')
    for k in range(4): e(f'v_cndmask_b32 v{8+k}, v{8+k}, v7, s[{64+2*k}:{65+2*k}]')
    e('ds_write_b128 v3, v[8:11]')
    e('s_waitcnt lgkmcnt(0)')
    e('s_barrier')
    st('B4', 7)
    if stamps: e('s_waitcnt lgkmcnt(0)')
    e('s_cmp_lt_u32 s3, 4')
    e(f's_cbranch_scc1 {N}_end')
    e('s_cmp_lg_u32 s49, 1')
    e(f's_cbranch_scc1 {N}_slow')
    ET = 192
    lookup_issue(e, RB[0], 0, 15)
    e('s_waitcnt lgkmcnt(4)')
    lookup_issue(e, RB[0], 15, 26)
    e('s_waitcnt lgkmcnt(0)')
    lookup_issue(e, RB[1], 0, 15)
    lookup_calc(e, RB[0], ET, 224)
    e('s_waitcnt lgkmcnt(4)')
    lookup_issue(e, RB[1], 15, 26)
    e('v_lshlrev_b32 v16, 4, v104')
    e(f's_mov_b64 exec, {VM[0]}')
    e(f'buffer_store_dwordx4 v[224:227], v16, s[36:39], 0 offen')
    e('s_mov_b64 exec, -1')
    e('s_waitcnt lgkmcnt(0)')
    lookup_calc(e, RB[1], ET, 228)
    e('v_lshlrev_b32 v17, 4, v105')
    e(f's_mov_b64 exec, {VM[1]}')
    e(f'buffer_store_dwordx4 v[228:231], v17, s[36:39], 0 offen')
    e('s_mov_b64 exec, -1')
    e(f's_branch {N}_end')
    e.lab(f'{N}_slow')
    gen_slow(e, N)
    e(f's_branch {N}_end')
    producer(e, N, st)
    e.lab(f'{N}_end')
    if stamps:
        e('s_waitcnt vmcnt(0)')
        e(f's_memrealtime s[100:101]')
        e('s_waitcnt lgkmcnt(0)')
        for i in range(9): e(f'v_mov_b32 v{8+i}, s{STAMP0+2*i}')
        e('v_mov_b32 v17, 0')
        e('s_lshl_b32 s46, s2, 3'); e('s_add_u32 s46, s46, s3'); e('s_lshl_b32 s46, s46, 6'); e('s_add_u32 s46, s46, 0x900000')
        e('s_mov_b32 s36, s6'); e('s_mov_b32 s37, s7'); e('s_mov_b32 s38, 0x10000000'); e('s_mov_b32 s39, 0x00020000')
        e('v_mov_b32 v2, s46')
        e('v_cmp_eq_u32 vcc, 0, v0')
        e('s_and_saveexec_b64 s[50:51], vcc')
        e(f's_cbranch_execz {N}_done')
        e('buffer_store_dwordx4 v[8:11], v2, s[36:39], 0 offen')
        e('buffer_store_dwordx4 v[12:15], v2, s[36:39], 0 offen offset:16')
        e('buffer_store_dwordx2 v[16:17], v2, s[36:39], 0 offen offset:32')
    e.lab(f'{N}_done')
    e('s_endpgm')
    return e.txt()

def gen_slow(e, N):
    e('s_mul_i32 s60, s50, 106496')
    e('s_mul_i32 s62, s50, 26624')
    e('s_mov_b32 s51, 0')
    e.lab(f'{N}_sl_g')
    e('buffer_load_dwordx4 v[232:235], v89, s[56:59], s60 offen')
    e('s_waitcnt vmcnt(0)')
    for k in range(4):
        e(f'v_xor_b32 v16, s40, v{232+k}')
        e('v_cmp_gt_u32 vcc, 4, v16')
        e(f's_cbranch_vccz {N}_sl_k{k}')
        e('s_and_saveexec_b64 s[80:81], vcc')
        e(f's_add_u32 s46, s62, {k}')
        e('v_add_u32 v104, s46, v91')
        prep_load(e, 104, 106, 108, 128, 112)
        e('s_waitcnt vmcnt(0)')
        prep_calc(e, 106, 108, 128, 112)
        lookup_issue(e, 128, 0, 15)
        e('s_waitcnt lgkmcnt(4)')
        lookup_issue(e, 128, 15, 26)
        e('s_waitcnt lgkmcnt(0)')
        lookup_calc(e, 128, 192, 224)
        e('v_lshlrev_b32 v16, 4, v104')
        e('buffer_store_dwordx4 v[224:227], v16, s[36:39], 0 offen')
        e('s_mov_b64 exec, s[80:81]')
        e.lab(f'{N}_sl_k{k}')
    e('s_add_u32 s60, s60, 1024')
    e('s_add_u32 s62, s62, 256')
    e('s_add_u32 s51, s51, 1')
    e('s_cmp_lt_u32 s51, 104')
    e(f's_cbranch_scc1 {N}_sl_g')
```

```python
import sys
sys.path.insert(0, 'scratch'); sys.path.insert(0, 'gen')
import importlib, os
k1 = importlib.import_module(os.environ.get('K1MOD', 'k1v4')).k1
from k1v2 import k2c
from k2gen import kd
stamps = 'iter' if '--iter' in sys.argv else ('--stamps' in sys.argv)
out = sys.argv[1]
s = '''; AFM: K1 builds per-vocabulary-row pair tables in LDS and emits partial softmax records; K2 combines them
; @launch kernel=afm_tab_kernel grid=(256,1,1) block=(512,1,1) lds=163840
; @launch kernel=afm_out_kernel grid=(128,1,1) block=(256,1,1) lds=0
.amdgcn_target "amdgcn-amd-amdhsa--gfx950"
.text
.globl afm_tab_kernel
.globl afm_out_kernel
'''
s += k1('afm_tab_kernel', stamps=stamps)
s += k2c('afm_out_kernel', stamps=stamps)
s += '.section .rodata,"a"\n.p2align 6\n' + kd('afm_tab_kernel', 256, 102) + '.p2align 6\n' + kd('afm_out_kernel', 64, 48)
open(out, 'w').write(s)
```

```python
import sys, os, importlib
sys.path.insert(0, 'scratch'); sys.path.insert(0, 'gen')
k1 = importlib.import_module(os.environ.get('K1MOD', 'k1v6')).k1
from k2gen import kd
stamps = 'iter' if '--iter' in sys.argv else ('--stamps' in sys.argv)
out = sys.argv[1]
NAME = 'standalone__factorization_afm__recsys_kernel'
s = f"""; AFM forward in one launch.
; @launch grid=(256,1,1) block=(512,1,1) lds=163840
.amdgcn_target "amdgcn-amd-amdhsa--gfx950"
.text
.globl {NAME}
"""
s += k1(NAME, stamps=stamps)
s += '.section .rodata,"a"\n.p2align 6\n' + kd(NAME, 256, 102)
open(out, 'w').write(s)
```

```python
import struct
LOG2E = 1.4426950408889634
C_LIN = 0.5 * LOG2E
def f2u(x): return struct.unpack('<I', struct.pack('<f', x))[0]

NPROD = 6
PCH = 17758
NEL = 4096 * 26
BUCK_OFF = 0x200000
BUCK_P = 65536
SMALL = 129024
S_H, S_B, S_P = SMALL, SMALL + 256, SMALL + 512
FLAG_T, FLAG_A, FLAG_I, PFX, DUMMY = SMALL + 768, SMALL + 784, SMALL + 800, SMALL + 816, SMALL + 864
X_BASE = 131072
LS_BASE = X_BASE
R_BASE = X_BASE + 16384 + 256
AFR = R_BASE + 8192
STG = AFR + 4096
NEG_BIG = f2u(-1e30)
DUMMY_VAL = 0x0000ff80
import os
RECF = os.environ.get('RECF', '')

class Em:
    def __init__(self): self.l = []
    def __call__(self, s): self.l.append('    ' + s)
    def lab(self, s): self.l.append(s + ':')
    def c(self, s): self.l.append('    ; ' + s)
    def txt(self): return '\n'.join(self.l) + '\n'
def vr(b, n=1): return f'v{b}' if n == 1 else f'v[{b}:{b+n-1}]'

A0 = 128; H0 = 96; BI0 = 64; BF0 = 32; D0 = 16; P0 = 8; BA0 = 4
def A(t, s): return vr(A0 + 16*t + 4*s, 4)
def BI(t): return vr(BI0 + 4*t, 4)
def BF(buf, s): return vr(BF0 + 16*buf + 4*s, 4)
def D(i): return vr(D0 + 4*i, 4)

STAMP0 = 84
class Stamps:
    def __init__(self, e, on): self.e = e; self.on = on
    def __call__(self, name, idx):
        if self.on: self.e(f's_memrealtime s[{STAMP0+2*idx}:{STAMP0+2*idx+1}]')

def prep_load(e, E, X, I, R, tmp):
    t0, t1, t2 = tmp, tmp+1, tmp+2
    e(f'v_mul_hi_u32 v{t0}, v{E}, s41')
    e(f'v_lshlrev_b32 v{t2}, 2, v{E}')
    e(f'v_mul_u32_u24 v{t1}, 26, v{t0}')
    e(f'v_mul_u32_u24 v{t0}, 104, v{t0}')
    e(f'v_sub_u32 v{I}, v{E}, v{t1}')
    e(f'buffer_load_dword v{X}, v{t2}, s[56:59], 0 offen')
    for q in range(6): e(f'buffer_load_dwordx4 {vr(R+4*q,4)}, v{t0}, s[56:59], 0 offen offset:{16*q}')
    e(f'buffer_load_dwordx2 {vr(R+24,2)}, v{t0}, s[56:59], 0 offen offset:96')

def prep_calc(e, X, I, R, tmp):
    t0, t1 = tmp, tmp+1
    e(f'v_and_b32 v{t0}, 3, v{X}')
    e(f'v_mul_u32_u24 v{t0}, 2052, v{t0}')
    e(f'v_add_u32 v{t0}, {R_BASE}, v{t0}')
    def m(j): return f's[{64 + 2*(j % 4)}:{65 + 2*(j % 4)}]'
    for j in range(2): e(f'v_cmp_le_u32 {m(j)}, {j}, v{I}')
    for j in range(26):
        y = R + j
        if j + 2 < 26: e(f'v_cmp_le_u32 {m(j+2)}, {j+2}, v{I}')
        e(f'v_subb_co_u32 v{y}, vcc, v{y}, v{X}, {m(j)}')
        e(f'v_add_u32 v{t1}, s42, v{y}')
        e(f'v_min_u32 v{y}, v{y}, v{t1}')
        e(f'v_addc_co_u32 v{y}, vcc, 0, v{y}, {m(j)}')
        e(f'v_min_u32 v{y}, s43, v{y}')
        e(f'v_lshl_add_u32 v{y}, v{y}, 2, v{t0}')

def lookup_issue(e, R, lo, hi):
    for j in range(lo, hi): e(f'ds_read_b32 v{R+j}, v{R+j}')

def lookup_calc(e, R, Et, out):
    for j in range(26): e(f'v_lshlrev_b32 v{Et+j}, 16, v{R+j}')
    m = out
    e(f'v_max3_f32 v{m}, v{Et}, v{Et+1}, s45')
    for j in range(2, 26, 2): e(f'v_max3_f32 v{m}, v{m}, v{Et+j}, v{Et+j+1}')
    for j in range(26): e(f'v_sub_f32 v{Et+j}, v{Et+j}, v{m}')
    for j in range(26):
        e(f'v_exp_f32 v{Et+j}, v{Et+j}')
        e(f'v_and_b32 v{R+j}, 0xffff0000, v{R+j}')
    e(f'v_add_f32 v{out+1}, v{Et}, v{Et+1}')
    e(f'v_mul_f32 v{out+2}, v{Et}, v{R}')
    e(f'v_fmac_f32 v{out+2}, v{Et+1}, v{R+1}')
    for j in range(2, 26):
        e(f'v_add_f32 v{out+1}, v{out+1}, v{Et+j}')
        e(f'v_fmac_f32 v{out+2}, v{Et+j}, v{R+j}')
    e(f'v_mov_b32 v{out+3}, 0')

def lds_poll4(e, lab, areg, off, tmp=16):
    e.lab(lab)
    e(f'ds_read_b128 {vr(tmp,4)}, v{areg} offset:{off}')
    e('s_waitcnt lgkmcnt(0)')
    e(f'v_add3_u32 v{tmp}, v{tmp}, v{tmp+1}, v{tmp+2}')
    e(f'v_add_u32 v{tmp}, v{tmp}, v{tmp+3}')
    e('s_nop 0')
    e(f'v_readfirstlane_b32 s46, v{tmp}')
    e('s_cmp_lg_u32 s46, 4')
    e(f's_cbranch_scc1 {lab}')

def lds_poll4c(e, lab):
    e.lab(lab)
    e(f'v_mov_b32 v12, {FLAG_T}')
    e('ds_read_b128 v[12:15], v12')
    e('s_waitcnt lgkmcnt(0)')
    e('v_add3_u32 v12, v12, v13, v14')
    e('v_add_u32 v12, v12, v15')
    e('s_nop 0')
    e('v_readfirstlane_b32 s46, v12')
    e('s_cmp_lg_u32 s46, 4')
    e(f's_cbranch_scc1 {lab}')

def producer(e, N, st):
    CNTP, IMG = 0, 1024
    e.lab(f'{N}_prod')
    e.c('producer: bin elements [PCH*p, ...) by owner = idx>>2')
    e('s_lshl_b32 s46, s3, 6')
    e('v_add_u32 v1, s46, v0')
    e('v_lshlrev_b32 v2, 4, v1')
    e('v_lshlrev_b32 v3, 2, v1')
    e('v_mov_b32 v4, 0')
    e('s_cmp_ge_u32 s3, 4')
    e(f's_cbranch_scc1 {N}_pz')
    e('ds_write_b32 v3, v4')
    e.lab(f'{N}_pz')
    e('s_waitcnt lgkmcnt(0)')
    e('s_mov_b32 s56, s52'); e('s_mov_b32 s57, s53'); e(f's_mov_b32 s58, {NEL*4}'); e('s_mov_b32 s59, 0x00020000')
    e(f's_mul_i32 s60, s2, {PCH*4}')
    for q in range(9):
        e(f'buffer_load_dwordx4 {vr(16+4*q,4)}, v2, s[56:59], s60 offen')
        if q < 8: e('s_add_u32 s60, s60, 8192')
    e(f's_mov_b32 s61, {PCH}')
    e('s_cmp_eq_u32 s2, 5')
    e(f's_cselect_b32 s61, {NEL - 5*PCH}, s61')
    e('v_mov_b32 v5, 1')
    e('v_mov_b32 v6, 1000')
    e('s_barrier')
    RK = 60
    def atom(q):
        e(f's_waitcnt vmcnt({8-q})')
        for k in range(4):
            x = 16 + 4*q + k
            if q == 8:
                e(f'v_add_u32 v8, {16384 + k}, v3')
                e('v_cmp_gt_u32 vcc, s61, v8')
                e('s_nop 1')
                e(f'v_cndmask_b32 v{x}, v6, v{x}, vcc')
            e(f'v_and_b32 v{68 + 4*(q%2) + k}, -4, v{x}')
            e(f'ds_add_rtn_u32 v{RK + 4*(q%2) + k}, v{68 + 4*(q%2) + k}, v5')
    def wr(q):
        for k in range(4):
            r = RK + 4*(q%2) + k; a = 68 + 4*(q%2) + k
            e(f'v_min_u32 v{r}, 126, v{r}')
            e(f'v_lshlrev_b32 v{a}, 6, v{a}')
            e(f'v_lshl_add_u32 v{a}, v{r}, 1, v{a}')
            e(f'v_add_u32 v{r}, {2048*q + k}, v3')
            e(f'ds_write_b16 v{a}, v{r} offset:{IMG + 2}')
    atom(0)
    for q in range(1, 9):
        atom(q)
        e(f's_waitcnt lgkmcnt({4 if q == 1 else 8})')
        wr(q-1)
    e('s_waitcnt lgkmcnt(4)')
    wr(8)
    e('s_waitcnt lgkmcnt(0)')
    e('s_barrier')
    e('s_cmp_ge_u32 s3, 4')
    e(f's_cbranch_scc1 {N}_pc')
    e('ds_read_b32 v8, v3')
    e('v_lshlrev_b32 v9, 8, v1')
    e('s_waitcnt lgkmcnt(0)')
    e(f'ds_write_b16 v9, v8 offset:{IMG}')
    e('s_waitcnt lgkmcnt(0)')
    e.lab(f'{N}_pc')
    e('s_barrier')
    e('s_mov_b32 s36, s6'); e('s_mov_b32 s37, s7')
    e(f's_mul_i32 s60, s2, {BUCK_P}')
    e(f's_add_u32 s60, s60, {BUCK_OFF}')
    e('s_mov_b32 s38, 0x10000000')
    e('s_mov_b32 s39, 0x00020000')
    for r in range(8): e(f'ds_read_b128 {vr(16+4*r,4)}, v2 offset:{IMG + 8192*r}') if IMG + 8192*r < 65536 else None
    for r in range(8):
        e(f's_waitcnt lgkmcnt({7-r})')
        e(f'buffer_store_dwordx4 {vr(16+4*r,4)}, v2, s[36:39], s60 offen sc1')
        if r < 7: e('s_add_u32 s60, s60, 8192')
    e('s_waitcnt vmcnt(0)')
    e('s_barrier')
    e('s_cmp_lg_u32 s3, 0')
    e(f's_cbranch_scc1 {N}_end')
    e('s_load_dwordx2 s[8:9], s[0:1], 72')
    e('s_waitcnt lgkmcnt(0)')
    e('s_mov_b32 s10, 256'); e('s_mov_b32 s11, 0x00020000')
    e('v_mov_b32 v8, 0')
    e('s_mov_b64 exec, 1')
    e('buffer_atomic_add v5, v8, s[8:11], 0 offen')
    e('s_mov_b64 exec, -1')
    e(f's_branch {N}_end')

def k1(name, stamps=False):
    e = Em(); N = name; st = Stamps(e, stamps)
    e.l.append(f'.p2align 8\n.type {name},@function\n{name}:')
    e('s_cmp_ge_u32 s2, 256')
    e(f's_cbranch_scc1 {N}_done')
    st('start', 0)
    e('s_load_dwordx2 s[4:5], s[0:1], 8')
    e('s_load_dwordx8 s[8:15], s[0:1], 32')
    e('s_load_dwordx2 s[6:7], s[0:1], 80')
    e('s_load_dwordx2 s[52:53], s[0:1], 0')
    e('v_lshrrev_b32 v1, 6, v0')
    e('v_and_b32 v0, 63, v0')
    e('v_readfirstlane_b32 s3, v1')
    e(f's_cmp_lt_u32 s2, {NPROD}')
    e(f's_cbranch_scc1 {N}_prod')
    e(f's_sub_u32 s40, s2, {NPROD}')
    e('s_lshl_b32 s40, s40, 2')
    e('v_lshrrev_b32 v2, 4, v0')
    e('v_and_b32 v3, 15, v0')
    e('v_lshlrev_b32 v4, 1, v2')
    e('v_xor_b32 v4, v3, v4')
    e('v_lshlrev_b32 v4, 4, v4')
    e('v_lshl_add_u32 v4, v2, 8, v4')
    e('v_xor_b32 v5, 128, v4')
    e('s_lshl_b32 s41, s3, 12')
    e(f's_add_u32 s44, s41, {X_BASE}')
    e('s_waitcnt lgkmcnt(0)')
    e('s_mov_b32 s20, s8'); e('s_mov_b32 s21, s9'); e('s_mov_b32 s22, 32768'); e('s_mov_b32 s23, 0x00020000')
    e('s_cmp_lg_u32 s3, 4')
    e(f's_cbranch_scc1 {N}_nosmall')
    e('s_mov_b32 s24, s10'); e('s_mov_b32 s25, s11'); e('s_mov_b32 s26, 256'); e('s_mov_b32 s27, 0x00020000')
    e('s_mov_b32 s28, s12'); e('s_mov_b32 s29, s13'); e('s_mov_b32 s30, 256'); e('s_mov_b32 s31, 0x00020000')
    e('s_mov_b32 s32, s14'); e('s_mov_b32 s33, s15'); e('s_mov_b32 s34, 256'); e('s_mov_b32 s35, 0x00020000')
    e('v_lshlrev_b32 v9, 4, v0')
    e('s_mov_b64 exec, 0xffff')
    e(f's_mov_b32 m0, {S_H}'); e('s_nop 0')
    e('buffer_load_dwordx4 v9, s[28:31], 0 offen lds')
    e(f's_mov_b32 m0, {S_B}'); e('s_nop 0')
    e('buffer_load_dwordx4 v9, s[24:27], 0 offen lds')
    e(f's_mov_b32 m0, {S_P}'); e('s_nop 0')
    e('buffer_load_dwordx4 v9, s[32:35], 0 offen lds')
    e('s_mov_b64 exec, -1')
    e.lab(f'{N}_nosmall')
    for k in range(4):
        e(f's_add_u32 m0, s44, {1024*k}')
        e(f's_add_u32 s46, s41, {1024*k}')
        e(f'buffer_load_dwordx4 {"v4" if k < 2 else "v5"}, s[20:23], s46 offen lds')
    e('s_cmp_ge_u32 s3, 4')
    e(f's_cbranch_scc1 {N}_helper')

    e.c('compute wave')
    e('s_cmp_lg_u32 s3, 0')
    e(f's_cbranch_scc1 {N}_noinit')
    e('v_lshlrev_b32 v9, 2, v0')
    e(f'v_add_u32 v9, {FLAG_T}, v9')
    e('v_mov_b32 v10, 0')
    e(f'v_mov_b32 v11, {DUMMY_VAL:#x}')
    e(f'v_cmp_eq_u32 vcc, {(DUMMY - FLAG_T)//4}, v0')
    e('s_nop 1')
    e('v_cndmask_b32 v10, v10, v11, vcc')
    e('s_mov_b64 exec, 0x1ffffff')
    e('ds_write_b32 v9, v10')
    e('s_mov_b64 exec, -1')
    e.lab(f'{N}_noinit')
    assert (DUMMY - FLAG_T)//4 == 24
    e('v_lshrrev_b32 v8, 2, v3')
    e('v_and_b32 v9, 3, v3')
    e('v_lshl_add_u32 v10, v2, 3, v8')
    e('v_lshlrev_b32 v10, 8, v10')
    e('v_lshl_add_u32 v10, v9, 3, v10')
    e('v_and_b32 v11, 1, v2')
    e('v_lshl_add_u32 v11, v11, 2, v8')
    e('v_lshl_add_u32 v10, v11, 5, v10')
    e(f'v_add_u32 v4, {X_BASE}, v10')
    for t in range(1, 8): e(f'v_xor_b32 v{4+t}, {32*t}, v4')
    e('v_xor_b32 v12, s3, v2')
    e('v_lshlrev_b32 v12, 4, v12')
    e('s_lshl_b32 s46, s3, 8')
    e('v_add_u32 v12, s46, v12')
    e('v_and_b32 v13, 1, v0')
    e('v_lshlrev_b32 v13, 4, v13')
    e('v_mov_b32 v14, 0xffff')
    e('v_lshlrev_b32 v13, v13, v14')
    e('v_and_b32 v14, 2, v0')
    e('v_cmp_eq_u32 vcc, 0, v14')
    e('v_mov_b32 v15, 0')
    e(f'v_lshlrev_b32 v1, 3, v2')
    e('v_cndmask_b32 v14, v15, v13, vcc')
    e('v_cndmask_b32 v13, v13, v15, vcc')
    e(f'v_add_u32 v1, {S_H}, v1')
    e('s_waitcnt vmcnt(0) lgkmcnt(0)')
    st('preB1', 1)
    e('s_barrier')
    st('B1', 2)
    for s in range(4):
        if s == 0: e(f'ds_read_b128 {vr(32,4)}, v12')
        else:
            e(f'v_xor_b32 v15, {64*s}, v12')
            e(f'ds_read_b128 {vr(32+4*s,4)}, v15')
    HP = A0 + 96; BP = A0 + 112
    for t in range(8): e(f'ds_read_b64 {vr(HP+2*t,2)}, v1 offset:{32*t}')
    e('s_waitcnt lgkmcnt(8)')
    for s in range(4):
        for q in range(2):
            e(f'v_and_b32 v{32+4*s+2*q}, v{32+4*s+2*q}, v14')
            e(f'v_and_b32 v{32+4*s+2*q+1}, v{32+4*s+2*q+1}, v13')
    for t in range(7): e(f'ds_read_b64 {vr(BP+2*t,2)}, v1 offset:{256+32*t}')
    e('s_waitcnt lgkmcnt(7)')
    e(f'ds_read_b64 {vr(BP+14,2)}, v1 offset:{256+32*7}')
    def trread(k):
        t, s, q = k >> 3, (k >> 1) & 3, k & 1
        e(f'ds_read_b64_tr_b16 {vr(48 + 2*(k % 8), 2)}, v{4+t} offset:{8192*s + 1024*q}')
    for t in range(8):
        for q in range(2):
            e(f'v_lshlrev_b32 v{H0+4*t+2*q}, 16, v{HP+2*t+q}')
            e(f'v_and_b32 v{H0+4*t+2*q+1}, 0xffff0000, v{HP+2*t+q}')
    e('s_waitcnt lgkmcnt(0)')
    for k in range(8): trread(k)
    for t in range(8):
        for q in range(2):
            e(f'v_lshlrev_b32 v{BI0+4*t+2*q}, 16, v{BP+2*t+q}')
            e(f'v_and_b32 v{BI0+4*t+2*q+1}, 0xffff0000, v{BP+2*t+q}')
    def cvts(k):
        t, s, q = k >> 3, (k >> 1) & 3, k & 1
        d = 16 + 4*(k % 4)
        a = A0 + 16*t + 4*s + 2*q
        e(f'v_cvt_pk_bf16_f32 v{a}, v{d}, v{d+1}')
        e(f'v_cvt_pk_bf16_f32 v{a+1}, v{d+2}, v{d+3}')
    for k in range(64):
        t, s, q = k >> 3, (k >> 1) & 3, k & 1
        if k % 4 == 0:
            rem = min(64 - k, 8) - 4
            e(f's_waitcnt lgkmcnt({rem})')
        e(f'v_mfma_f32_4x4x4_16b_bf16 {vr(16 + 4*(k % 4), 4)}, {vr(32+4*s+2*q, 2)}, {vr(48 + 2*(k % 8), 2)}, 0')
        if k == 3: e('s_nop 1')
        if k >= 3: cvts(k - 3)
        if k % 4 == 3:
            for kk in range(k + 5, min(k + 9, 64)): trread(kk)
    e('s_nop 2')
    cvts(61); cvts(62); e('s_nop 0'); cvts(63)
    e('v_xor_b32 v4, v2, v3')
    e('v_lshlrev_b32 v4, 4, v4')
    e('v_lshl_add_u32 v4, v3, 8, v4')
    for s in range(1, 4): e(f'v_xor_b32 v{BA0+s}, {64*s}, v4')
    e('s_lshl_b32 s46, s3, 11')
    e(f's_add_u32 s46, s46, {R_BASE - 256}')
    e('v_lshlrev_b32 v1, 2, v0')
    e('v_add_u32 v1, s46, v1')
    e(f'v_mov_b32 v12, {FLAG_T}')
    e(f'v_mov_b32 v13, {FLAG_T}')
    if stamps == 'iter':
        e('s_memrealtime s[60:61]'); e('s_memtime s[62:63]'); e('s_waitcnt lgkmcnt(0)')
        e('v_mov_b32 v3, 0'); e('v_writelane_b32 v3, s60, 8'); e('v_writelane_b32 v3, s62, 24')
    st('formed', 3)
    e('s_barrier')
    st('B2', 4)
    for s in range(4): e(f'ds_read_b128 {BF(0,s)}, v{BA0+s}')
    e('s_mov_b32 s47, 0')
    e.lab(f'{N}_loop')
    e('s_cmp_lg_u32 s47, 2')
    e(f's_cbranch_scc1 {N}_nopoll')
    lds_poll4(e, f'{N}_poll', 13, 0, tmp=20) if False else lds_poll4c(e, f'{N}_poll')
    e.lab(f'{N}_nopoll')
    def fma(C, r):
        Cm = C % 32
        j, t = Cm >> 3, Cm & 7
        d = D0 + 4*(Cm % 4) + r
        if t == 0 and r == 0: e(f'v_mul_f32 v{P0+j}, |v{d}|, v{H0+4*t+r}')
        else: e(f'v_fma_f32 v{P0+j}, |v{d}|, v{H0+4*t+r}, v{P0+j}')
    for m in range(128):
        j, t, s = m >> 5, (m >> 2) & 7, m & 3
        C = m >> 2
        if m % 32 == 0: e('s_waitcnt lgkmcnt(0)')
        c_in = BI(t) if s == 0 else D(C % 4)
        e(f'v_mfma_f32_16x16x32_bf16 {D(C % 4)}, {A(t,s)}, {BF(j & 1, s)}, {c_in}')
        fma(C - 2, s)
        mt = m & 31
        if mt in (1, 5, 9, 13):
            sn = mt >> 2
            e(f'ds_read_b128 {BF((j+1) & 1, sn)}, v{BA0+sn} offset:{4096*(j+1)}')
        if m == 9: e(f'v_permlane16_swap_b32 v{P0+2}, v{P0+3}')
        if m == 10: e(f'v_add_f32 v{P0+2}, v{P0+2}, v{P0+3}')
        if m == 12: e(f'v_permlane32_swap_b32 v2, v{P0+2}')
        if m == 13: e(f'v_add_f32 v2, v2, v{P0+2}')
        if m == 14: e('ds_write_b32 v1, v2')
        if m == 15: e('v_add_u32 v1, 256, v1')
        if m == 73: e(f'v_permlane16_swap_b32 v{P0}, v{P0+1}')
        if m == 74: e(f'v_add_f32 v2, v{P0}, v{P0+1}')
        if m >= 113 and m < 117:
            e(f'v_add_u32 v{BA0 + m - 113}, 16384, v{BA0 + m - 113}')
    if stamps == 'iter':
        e('s_memrealtime s[60:61]'); e('s_memtime s[62:63]'); e('s_waitcnt lgkmcnt(0)')
        e('s_mov_b32 m0, s47'); e('s_add_u32 s64, s47, 16'); e('v_writelane_b32 v3, s60, m0')
        e('s_mov_b32 m0, s64'); e('s_nop 0'); e('v_writelane_b32 v3, s62, m0')
    e('s_add_u32 s47, s47, 1')
    e('s_cmp_lt_u32 s47, 8')
    e(f's_cbranch_scc1 {N}_loop')
    e('s_nop 7')
    for C in (30, 31):
        for r in range(4): fma(C, r)
    e('s_nop 1')
    e(f'v_permlane16_swap_b32 v{P0+2}, v{P0+3}')
    e(f'v_add_f32 v{P0+2}, v{P0+2}, v{P0+3}')
    e('s_nop 1')
    e(f'v_permlane32_swap_b32 v2, v{P0+2}')
    e(f'v_add_f32 v2, v2, v{P0+2}')
    e('ds_write_b32 v1, v2')
    st('mainend', 5)
    if stamps == 'iter':
        e('s_lshl_b32 s46, s2, 2'); e('s_add_u32 s46, s46, s3'); e('s_lshl_b32 s46, s46, 8'); e('s_add_u32 s46, s46, 0xa00000')
        e('s_mov_b32 s36, s6'); e('s_mov_b32 s37, s7'); e('s_mov_b32 s38, 0x10000000'); e('s_mov_b32 s39, 0x00020000')
        e('v_lshlrev_b32 v4, 2, v0'); e('v_add_u32 v4, s46, v4')
        e('buffer_store_dword v3, v4, s[36:39], 0 offen')
    e(f's_branch {N}_fin')

    e.lab(f'{N}_helper')
    e.c('helper wave; hw = wave-4 in s50')
    e('s_sub_u32 s50, s3, 4')
    e('s_mov_b32 s16, s4'); e('s_mov_b32 s17, s5'); e('s_mov_b32 s18, 256000'); e('s_mov_b32 s19, 0x00020000')
    e('s_lshl_b32 s42, s50, 2')
    e('v_add_u32 v6, s42, v2')
    e('v_xor_b32 v7, v3, v6')
    e('v_lshlrev_b32 v7, 4, v7')
    e('v_lshl_add_u32 v120, v2, 8, v7')
    e('s_add_u32 s48, s40, s42')
    e('s_lshl_b32 s44, s50, 10')
    def tpiece(m):
        if m > 0: e('s_add_u32 s48, s48, 16')
        e('s_cmp_ge_u32 s48, 1000')
        e('s_cselect_b32 s46, 1000, 0')
        e('s_sub_u32 s48, s48, s46')
        e(f's_add_u32 m0, s44, {4096*m}')
        e('s_lshl_b32 s46, s48, 8')
        e('buffer_load_dwordx4 v120, s[16:19], s46 offen lds')
    for m in range(4): tpiece(m)
    e('v_lshrrev_b32 v8, 2, v3')
    e('v_and_b32 v9, 3, v3')
    e('v_lshl_add_u32 v8, v8, 3, v9')
    e('v_and_b32 v9, 7, v3')
    e('v_lshlrev_b32 v9, 1, v9')
    e('v_xor_b32 v9, v9, v2')
    e('v_lshlrev_b32 v9, 4, v9')
    e('v_lshl_add_u32 v8, v8, 8, v9')
    e('s_lshl_b32 s46, s50, 13')
    e(f's_add_u32 s46, s46, {X_BASE}')
    e('v_add_u32 v4, s46, v8')
    for k in range(1, 4): e(f'v_xor_b32 v{4+k}, {64*k}, v4')
    e('v_lshrrev_b32 v8, 2, v3')
    e('v_add_u32 v9, s42, v2')
    e('v_xor_b32 v9, v9, v8')
    e('v_lshlrev_b32 v9, 4, v9')
    e('v_lshl_add_u32 v12, v8, 8, v9')
    e('v_lshlrev_b32 v10, 4, v2')
    e(f'v_add_u32 v10, {S_H}, v10')
    e('s_lshl_b32 s46, s50, 6')
    e('v_add_u32 v11, s46, v10')
    e('v_lshlrev_b32 v15, 2, v0')
    e(f'v_add_u32 v15, {S_H}, v15')
    e('v_and_b32 v8, 3, v3')
    e(f'v_mov_b32 v9, {f2u(C_LIN):#x}')
    e('v_mov_b32 v16, 0')
    e('v_cmp_eq_u32 vcc, 0, v8')
    e('v_mov_b32 v17, -1')
    e('s_nop 0')
    e('v_cndmask_b32 v13, v16, v9, vcc')
    e('v_cmp_eq_u32 vcc, 1, v8')
    e('s_nop 1')
    e('v_cndmask_b32 v14, v16, v17, vcc')
    e('s_waitcnt vmcnt(3)')
    e('s_barrier')
    for half in range(2):
        for k in range(4):
            e(f'ds_read_b128 {vr(160 + 16*half + 4*k, 4)}, v{4+k} offset:{1024*half}')
    for k in range(4): e(f'ds_read_b128 {vr(32+4*k,4)}, v10 offset:{64*k}')
    for m in range(4, 9): tpiece(m)
    e('s_waitcnt lgkmcnt(4)')
    e('ds_read_b128 v[48:51], v11 offset:512')
    e('ds_read_b128 v[52:55], v12')
    e('ds_read_b32 v64, v15')
    e('ds_read_b32 v65, v15 offset:256')
    e('s_waitcnt vmcnt(0) lgkmcnt(0)')
    e('s_barrier')
    for m in range(9, 31): tpiece(m)
    e('s_cmp_ge_u32 s50, 2')
    e(f's_cbranch_scc1 {N}_nolast')
    tpiece(31)
    e.lab(f'{N}_nolast')
    for half in range(2):
        dd = vr(128 + 4*half, 4)
        for k in range(4):
            cin = '0' if k == 0 else dd
            e(f'v_mfma_f32_16x16x32_bf16 {dd}, {vr(160 + 16*half + 4*k, 4)}, {vr(32+4*k,4)}, {cin}')
    e('v_lshlrev_b32 v66, 16, v64'); e('v_and_b32 v67, 0xffff0000, v64')
    e('v_lshlrev_b32 v68, 16, v65'); e('v_and_b32 v69, 0xffff0000, v65')
    e('v_mul_f32 v66, v66, |v68|')
    e('v_fma_f32 v66, v67, |v69|, v66')
    for mode in ['row_ror:8 row_mask:0xf', 'row_ror:4 row_mask:0xf', 'row_ror:2 row_mask:0xf', 'row_ror:1 row_mask:0xf', 'row_bcast:15 row_mask:0xa', 'row_bcast:31 row_mask:0xc']:
        e('s_nop 1'); e(f'v_add_f32_dpp v66, v66, v66 {mode} bank_mask:0xf')
    e('s_nop 1')
    e('v_readlane_b32 s48, v66, 63')
    e(f's_mov_b32 s49, {f2u(-C_LIN):#x}')
    for i in range(4): e(f'v_and_b32 v{48+i}, v{48+i}, v14')
    e('v_mov_b32 v70, s49')
    e('v_mul_f32 v100, s48, v70')
    e('v_mov_b32 v101, 0'); e('v_mov_b32 v102, 0'); e('v_mov_b32 v103, 0')
    for jj in range(0, 8, 2):
        g0 = 128 + jj; pp = 48 + jj//2; tt = 52 + jj//2
        e(f'v_lshlrev_b32 v16, 16, v{pp}'); e(f'v_and_b32 v17, 0xffff0000, v{pp}')
        e(f'v_fma_f32 v16, v{g0}, v13, v16'); e(f'v_fma_f32 v17, v{g0+1}, v13, v17')
        e(f'v_lshlrev_b32 v18, 16, v{tt}'); e(f'v_and_b32 v19, 0xffff0000, v{tt}')
        e('v_mul_f32 v16, v16, v18'); e('v_mul_f32 v17, v17, v19')
        e(f'v_cvt_pk_bf16_f32 v{72 + jj//2}, v16, v17')
    e('v_lshlrev_b32 v8, 4, v0')
    e(f'v_add_u32 v8, {AFR}, v8')
    e('v_add_u32 v9, s44, v8')
    e('ds_write_b128 v9, v[72:75]')
    e('s_lshl_b32 s46, s50, 2')
    e(f's_add_u32 s46, s46, {FLAG_A}')
    e('v_mov_b32 v10, s46')
    e('v_mov_b32 v11, 1')
    e('s_waitcnt lgkmcnt(0)')
    e('ds_write_b32 v10, v11')
    e('v_add_u32 v21, -16, v10')
    e('s_waitcnt vmcnt(0)')
    e('ds_write_b32 v21, v11')
    e(f'v_mov_b32 v12, {FLAG_T}')
    lds_poll4(e, f'{N}_pollA', 12, 16)
    for s in range(4): e(f'ds_read_b128 {vr(72+4*s,4)}, v8 offset:{1024*s}')
    e('v_xor_b32 v4, v2, v3')
    e('v_lshlrev_b32 v4, 4, v4')
    e('v_lshl_add_u32 v4, v3, 8, v4')
    e('s_lshl_b32 s51, s50, 12')
    e('v_add_u32 v4, s51, v4')
    for s in range(1, 4): e(f'v_xor_b32 v{4+s}, {64*s}, v4')
    e('v_lshlrev_b32 v8, 12, v2')
    e('v_lshl_add_u32 v8, v3, 3, v8')
    e('s_lshl_b32 s51, s50, 7')
    e(f's_add_u32 s51, s51, {LS_BASE}')
    e('v_add_u32 v8, s51, v8')
    for s in range(4): e(f'v_add_u32 v{20+s}, 65536, v{4+s}')
    lds_poll4(e, f'{N}_pollT', 12, 0)
    st('hTland', 1)
    for i in range(8):
        buf = 160 + 16*(i & 1)
        def rd(ii):
            b2 = 160 + 16*(ii & 1)
            base = 4 if ii < 4 else 20
            for s in range(4): e(f'ds_read_b128 {vr(b2+4*s,4)}, v{base+s} offset:{16384*(ii % 4)}')
        if i == 0: rd(0)
        e('s_waitcnt lgkmcnt(0)')
        dd = vr(192 + 4*(i & 1), 4)
        for s in range(4):
            cin = vr(100,4) if s == 0 else dd
            e(f'v_mfma_f32_16x16x32_bf16 {dd}, {vr(72+4*s,4)}, {vr(buf+4*s,4)}, {cin}')
        if i < 7: rd(i+1)
        e('s_nop 4' if i < 7 else 's_nop 7')
        e(f'ds_write_b64 v8, {vr(192 + 4*(i & 1), 2)} offset:{512*i}')
    st('hLS', 3)
    e('s_mov_b32 s56, s52'); e('s_mov_b32 s57, s53'); e(f's_mov_b32 s58, {NEL*4}'); e('s_mov_b32 s59, 0x00020000')
    e('s_mov_b32 s36, s6'); e('s_mov_b32 s37, s7'); e('s_mov_b32 s38, 0x10000000'); e('s_mov_b32 s39, 0x00020000')
    e('s_mov_b32 s41, 165191050'); e('s_movk_i32 s42, 1000'); e('s_movk_i32 s43, 501'); e(f's_mov_b32 s45, {NEG_BIG:#x}')
    e('v_lshlrev_b32 v89, 4, v0')
    e('v_lshlrev_b32 v91, 2, v0')
    e('s_cmp_lg_u32 s50, 0')
    e(f's_cbranch_scc1 {N}_waitI')
    e('s_load_dwordx2 s[60:61], s[0:1], 72')
    e('s_waitcnt lgkmcnt(0)')
    e('s_mov_b32 s62, 256'); e('s_mov_b32 s63, 0x00020000')
    e('v_mov_b32 v16, 0')
    e('s_mov_b32 s51, 0')
    e('s_mov_b32 s49, 2')
    e.lab(f'{N}_pollG')
    e('buffer_load_dword v17, v16, s[60:63], 0 offen sc1')
    e('s_waitcnt vmcnt(0)')
    e('v_readfirstlane_b32 s46, v17')
    e(f's_cmp_eq_u32 s46, {NPROD}')
    e(f's_cbranch_scc1 {N}_gotG')
    e('s_add_u32 s51, s51, 1')
    e('s_cmp_lt_u32 s51, 4096')
    e(f's_cbranch_scc1 {N}_pollG')
    e(f's_branch {N}_pubI')
    e.lab(f'{N}_gotG')
    e('s_lshr_b32 s46, s40, 2')
    e('s_lshl_b32 s46, s46, 8')
    e(f's_add_u32 s46, s46, {BUCK_OFF}')
    for p in range(NPROD):
        e(f'buffer_load_dword v{24+p}, v91, s[36:39], s46 offen sc1')
        if p < NPROD-1: e(f's_add_u32 s46, s46, {BUCK_P}')
    e(f'v_add_u32 v16, {STG}, v91')
    e('s_waitcnt vmcnt(0)')
    for p in range(NPROD): e(f'ds_write_b32 v16, v{24+p} offset:{256*p}')
    for p in range(NPROD): e(f'v_readfirstlane_b32 s{64+p}, v{24+p}')
    e('s_mov_b32 s49, 1')
    e('s_mov_b32 s70, 0')
    e('v_mov_b32 v17, 0')
    for p in range(NPROD):
        e(f's_and_b32 s{64+p}, s{64+p}, 0xffff')
        e(f's_cmp_gt_u32 s{64+p}, 127')
        e('s_cselect_b32 s49, 2, s49')
        e(f'v_writelane_b32 v17, s70, {p}')
        e(f's_add_u32 s70, s70, s{64+p}')
    e(f'v_writelane_b32 v17, s70, {NPROD}')
    e('s_cmp_gt_u32 s70, 512')
    e('s_cselect_b32 s49, 2, s49')
    e(f'v_add_u32 v18, {PFX}, v91')
    e('s_mov_b64 exec, 0x7f')
    e('ds_write_b32 v18, v17')
    e('s_mov_b64 exec, -1')
    e.lab(f'{N}_pubI')
    e('v_mov_b32 v17, s49')
    e('s_waitcnt lgkmcnt(0)')
    e('ds_write_b32 v12, v17 offset:32')
    e.lab(f'{N}_waitI')
    e('ds_read_b32 v16, v12 offset:32')
    e('s_waitcnt lgkmcnt(0)')
    e('v_readfirstlane_b32 s49, v16')
    e('s_cmp_eq_u32 s49, 0')
    e(f's_cbranch_scc1 {N}_waitI')
    st('hitems', 5)
    e('s_cmp_lg_u32 s49, 1')
    e(f's_cbranch_scc1 {N}_hskip')
    e('ds_read_b128 v[16:19], v12 offset:48')
    e('ds_read_b128 v[20:23], v12 offset:64')
    e('s_waitcnt lgkmcnt(0)')
    for p in range(1, 7): e(f'v_readfirstlane_b32 s{64+p}, v{16+p}')
    e('s_lshl_b32 s46, s50, 7')
    for beta in range(2):
        vi = 24 + beta; vp = 26 + beta; va = 28 + beta
        e(f'v_add_u32 v{vi}, s46, v0')
        if beta == 1: e(f'v_add_u32 v{vi}, 64, v{vi}')
        e(f'v_mov_b32 v{vp}, 0')
        for p in range(1, 6): e(f'v_cmp_le_u32 s[{70+2*p}:{71+2*p}], s{64+p}, v{vi}')
        for p in range(1, 6): e(f'v_addc_co_u32 v{vp}, vcc, 0, v{vp}, s[{70+2*p}:{71+2*p}]')
        e(f'v_lshlrev_b32 v{va}, 2, v{vp}')
        e(f'ds_read_b32 v{30+beta}, v{va} offset:0') if False else None
        e(f'v_add_u32 v{va}, {PFX}, v{va}')
        e(f'ds_read_b32 v{30+beta}, v{va}')
        e(f'v_cmp_gt_u32 s[{82 if beta else 54}:{83 if beta else 55}], s70, v{vi}')
    e('s_waitcnt lgkmcnt(0)')
    VM = ['s[54:55]', 's[82:83]']
    for beta in range(2):
        vi = 24 + beta; vp = 26 + beta; va = 28 + beta
        e(f'v_sub_u32 v{va}, v{vi}, v{30+beta}')
        e(f'v_lshlrev_b32 v{va}, 1, v{va}')
        e(f'v_lshl_add_u32 v{va}, v{vp}, 8, v{va}')
        e(f'v_cndmask_b32 v{va}, 0, v{va}, {VM[beta]}')
        e(f'v_add_u32 v{va}, {STG + 2}, v{va}')
        e(f'ds_read_u16 v{30+beta}, v{va}')
    e(f's_mov_b32 s46, {PCH}')
    e('s_waitcnt lgkmcnt(0)')
    for beta in range(2):
        e(f'v_mad_u32_u24 v{104+beta}, v{26+beta}, s46, v{30+beta}')
        e(f'v_cndmask_b32 v{104+beta}, 0, v{104+beta}, {VM[beta]}')
    RB = [128, 160]
    for beta in range(2): prep_load(e, 104+beta, 106+beta, 108+beta, RB[beta], 112)
    e('s_waitcnt vmcnt(8)')
    prep_calc(e, 106, 108, RB[0], 112)
    e('s_waitcnt vmcnt(0)')
    prep_calc(e, 107, 109, RB[1], 112)
    e.lab(f'{N}_hskip')
    st('hprep', 2)

    e.lab(f'{N}_fin')
    e('s_waitcnt lgkmcnt(0)')
    e('s_barrier')
    st('B3', 6)
    e('s_lshl_b32 s46, s3, 6')
    e('v_add_u32 v1, s46, v0')
    e('v_lshlrev_b32 v2, 4, v1')
    e(f'v_add_u32 v3, {R_BASE}, v2')
    e('v_lshlrev_b32 v4, 5, v1')
    e(f'v_add_u32 v4, {LS_BASE}, v4')
    e('ds_read_b128 v[8:11], v3')
    e('ds_read_b128 v[12:15], v4')
    e('ds_read_b128 v[16:19], v4 offset:16')
    e('s_mov_b32 s47, 501')
    e('s_cmp_ge_u32 s40, 500')
    e('s_cselect_b32 s47, 500, s47')
    e('v_lshrrev_b32 v5, 7, v1')
    e('v_add_u32 v5, s47, v5')
    e('v_and_b32 v6, 127, v1')
    e('v_lshlrev_b32 v6, 2, v6')
    e('v_sub_u32 v5, v5, v6')
    e(f'v_mov_b32 v7, {DUMMY_VAL:#x}')
    e(f's_mov_b32 s46, {f2u(C_LIN):#x}')
    for k in range(4): e(f'v_cmp_ge_i32 s[{64+2*k}:{65+2*k}], {k}, v5')
    e('s_waitcnt lgkmcnt(0)')
    e('v_fma_f32 v8, v8, s46, v12'); e('v_fma_f32 v9, v9, s46, v14')
    e('v_fma_f32 v10, v10, s46, v16'); e('v_fma_f32 v11, v11, s46, v18')
    e('v_cvt_pk_bf16_f32 v8, v8, v13'); e('v_cvt_pk_bf16_f32 v9, v9, v15')
    e('v_cvt_pk_bf16_f32 v10, v10, v17'); e('v_cvt_pk_bf16_f32 v11, v11, v19')
    for k in range(4): e(f'v_cndmask_b32 v{8+k}, v{8+k}, v7, s[{64+2*k}:{65+2*k}]')
    e('ds_write_b128 v3, v[8:11]')
    e('s_waitcnt lgkmcnt(0)')
    e('s_barrier')
    st('B4', 7)
    if stamps: e('s_waitcnt lgkmcnt(0)')
    e('s_cmp_lt_u32 s3, 4')
    e(f's_cbranch_scc1 {N}_end')
    e('s_cmp_lg_u32 s49, 1')
    e(f's_cbranch_scc1 {N}_slow')
    ET = 192
    lookup_issue(e, RB[0], 0, 15)
    e('s_waitcnt lgkmcnt(4)')
    lookup_issue(e, RB[0], 15, 26)
    e('s_waitcnt lgkmcnt(0)')
    lookup_issue(e, RB[1], 0, 15)
    lookup_calc(e, RB[0], ET, 224)
    e('s_waitcnt lgkmcnt(4)')
    lookup_issue(e, RB[1], 15, 26)
    e('v_lshlrev_b32 v16, 4, v104')
    e(f's_mov_b64 exec, {VM[0]}')
    e(f'buffer_store_dwordx4 v[224:227], v16, s[36:39], 0 offen' + RECF)
    e('s_mov_b64 exec, -1')
    e('s_waitcnt lgkmcnt(0)')
    lookup_calc(e, RB[1], ET, 228)
    e('v_lshlrev_b32 v17, 4, v105')
    e(f's_mov_b64 exec, {VM[1]}')
    e(f'buffer_store_dwordx4 v[228:231], v17, s[36:39], 0 offen' + RECF)
    e('s_mov_b64 exec, -1')
    e(f's_branch {N}_end')
    e.lab(f'{N}_slow')
    gen_slow(e, N)
    e(f's_branch {N}_end')
    producer(e, N, st)
    e.lab(f'{N}_end')
    if stamps:
        e('s_waitcnt vmcnt(0)')
        e(f's_memrealtime s[100:101]')
        e('s_waitcnt lgkmcnt(0)')
        for i in range(9): e(f'v_mov_b32 v{8+i}, s{STAMP0+2*i}')
        e('v_mov_b32 v17, 0')
        e('s_lshl_b32 s46, s2, 3'); e('s_add_u32 s46, s46, s3'); e('s_lshl_b32 s46, s46, 6'); e('s_add_u32 s46, s46, 0x900000')
        e('s_mov_b32 s36, s6'); e('s_mov_b32 s37, s7'); e('s_mov_b32 s38, 0x10000000'); e('s_mov_b32 s39, 0x00020000')
        e('v_mov_b32 v2, s46')
        e('v_cmp_eq_u32 vcc, 0, v0')
        e('s_and_saveexec_b64 s[50:51], vcc')
        e(f's_cbranch_execz {N}_done')
        e('buffer_store_dwordx4 v[8:11], v2, s[36:39], 0 offen')
        e('buffer_store_dwordx4 v[12:15], v2, s[36:39], 0 offen offset:16')
        e('buffer_store_dwordx2 v[16:17], v2, s[36:39], 0 offen offset:32')
    e.lab(f'{N}_done')
    e('s_endpgm')
    return e.txt()

def gen_slow(e, N):
    e('s_mul_i32 s60, s50, 106496')
    e('s_mul_i32 s62, s50, 26624')
    e('s_mov_b32 s51, 0')
    e.lab(f'{N}_sl_g')
    e('buffer_load_dwordx4 v[232:235], v89, s[56:59], s60 offen')
    e('s_waitcnt vmcnt(0)')
    for k in range(4):
        e(f'v_xor_b32 v16, s40, v{232+k}')
        e('v_cmp_gt_u32 vcc, 4, v16')
        e(f's_cbranch_vccz {N}_sl_k{k}')
        e('s_and_saveexec_b64 s[80:81], vcc')
        e(f's_add_u32 s46, s62, {k}')
        e('v_add_u32 v104, s46, v91')
        prep_load(e, 104, 106, 108, 128, 112)
        e('s_waitcnt vmcnt(0)')
        prep_calc(e, 106, 108, 128, 112)
        lookup_issue(e, 128, 0, 15)
        e('s_waitcnt lgkmcnt(4)')
        lookup_issue(e, 128, 15, 26)
        e('s_waitcnt lgkmcnt(0)')
        lookup_calc(e, 128, 192, 224)
        e('v_lshlrev_b32 v16, 4, v104')
        e('buffer_store_dwordx4 v[224:227], v16, s[36:39], 0 offen' + RECF)
        e('s_mov_b64 exec, s[80:81]')
        e.lab(f'{N}_sl_k{k}')
    e('s_add_u32 s60, s60, 1024')
    e('s_add_u32 s62, s62, 256')
    e('s_add_u32 s51, s51, 1')
    e('s_cmp_lt_u32 s51, 104')
    e(f's_cbranch_scc1 {N}_sl_g')
```

```python
from k1v3 import Em, vr, NEG_BIG
def k2c(name, nsets=2, wpb=4, stamps=False):
    e = Em(); N = name
    nwg = 4096 // (2*nsets*wpb)
    e.l.append(f'.p2align 8\n.type {name},@function\n{name}:')
    e(f's_cmp_ge_u32 s2, {nwg}')
    e(f's_cbranch_scc1 {N}_done')
    if stamps: e('s_memrealtime s[40:41]')
    e('s_load_dwordx2 s[4:5], s[0:1], 80')
    e('s_load_dwordx2 s[6:7], s[0:1], 64')
    e('v_lshrrev_b32 v1, 6, v0')
    e('v_and_b32 v0, 63, v0')
    e('v_readfirstlane_b32 s3, v1')
    e('v_lshrrev_b32 v2, 5, v0')
    e('v_and_b32 v3, 31, v0')
    e(f's_mul_i32 s8, s2, {wpb}'); e('s_add_u32 s8, s8, s3')
    e(f's_mul_i32 s9, s8, {2*nsets}')
    e('v_mul_u32_u24 v4, 26, v2')
    e('v_add_u32 v4, v4, v3')
    e('v_lshlrev_b32 v4, 4, v4')
    e('s_mul_i32 s10, s9, 416')
    for q in range(nsets):
        e(f'v_mov_b32 v{8+4*q}, {NEG_BIG:#x}'); e(f'v_mov_b32 v{9+4*q}, 0'); e(f'v_mov_b32 v{10+4*q}, 0')
    e('v_cmp_gt_u32 vcc, 26, v3')
    e('s_waitcnt lgkmcnt(0)')
    e('s_mov_b32 s12, s4'); e('s_mov_b32 s13, s5'); e(f's_mov_b32 s14, {106496*16}'); e('s_mov_b32 s15, 0x00020000')
    e('s_and_saveexec_b64 s[20:21], vcc')
    for q in range(nsets):
        e(f'buffer_load_dwordx3 {vr(8+4*q,3)}, v4, s[12:15], s10 offen offset:{832*q}')
    e('s_mov_b64 exec, s[20:21]')
    e('s_mov_b32 s16, s6'); e('s_mov_b32 s17, s7'); e('s_mov_b32 s18, 8192'); e('s_mov_b32 s19, 0x00020000')
    e('s_lshl_b32 s10, s9, 1')
    e('v_lshlrev_b32 v5, 1, v2')
    e('v_add_u32 v5, s10, v5')
    e('v_cmp_eq_u32 s[22:23], 0, v3')
    e('s_waitcnt vmcnt(0)')
    if stamps: e('s_memrealtime s[42:43]')
    M = 24
    def allred(op, regs):
        for mode in ['row_ror:8', 'row_ror:4', 'row_ror:2', 'row_ror:1']:
            for r in regs: e(f'{op}_dpp v{r}, v{r}, v{r} {mode} row_mask:0xf bank_mask:0xf')
            if len(regs) == 1: e('s_nop 1')
            elif len(regs) == 2: e('s_nop 0')
        for r in regs: e(f'v_mov_b32 v{r+16}, v{r}')
        e('s_nop 1')
        for r in regs: e(f'v_permlane16_swap_b32 v{r}, v{r+16}')
        for r in regs: e(f'{op} v{r}, v{r}, v{r+16}')
    ms = [M+q for q in range(nsets)]
    for q in range(nsets): e(f'v_mov_b32 v{M+q}, v{8+4*q}')
    e('s_nop 1')
    allred('v_max_f32', ms)
    for q in range(nsets): e(f'v_sub_f32 v{8+4*q}, v{8+4*q}, v{M+q}')
    for q in range(nsets): e(f'v_exp_f32 v{8+4*q}, v{8+4*q}')
    e('s_nop 0')
    for q in range(nsets):
        e(f'v_mul_f32 v{M+q}, v{9+4*q}, v{8+4*q}')
        e(f'v_mul_f32 v{M+nsets+q}, v{10+4*q}, v{8+4*q}')
    e('s_nop 1')
    allred('v_add_f32', [M+q for q in range(2*nsets)])
    for q in range(nsets): e(f'v_rcp_f32 v{M+q}, v{M+q}')
    e('s_nop 0')
    for q in range(nsets): e(f'v_mul_f32 v{M+q}, v{M+q}, v{M+nsets+q}')
    for q in range(nsets): e(f'v_cvt_pk_bf16_f32 v{M+q}, v{M+q}, v{M+q}')
    e('s_mov_b64 exec, s[22:23]')
    for q in range(nsets): e(f'buffer_store_short v{M+q}, v5, s[16:19], 0 offen offset:{4*q}' + __import__('os').environ.get('OUTF', ''))
    if stamps:
        e('s_memrealtime s[44:45]')
        e('s_waitcnt lgkmcnt(0)')
        e('v_mov_b32 v8, s40'); e('v_mov_b32 v9, s42'); e('v_mov_b32 v10, s44'); e('v_mov_b32 v11, 0')
        e('s_lshl_b32 s10, s8, 4'); e('s_add_u32 s10, s10, 0x800000')
        e('v_mov_b32 v4, s10')
        e('s_mov_b32 s14, 0x10000000')
        e('s_mov_b64 exec, 1')
        e('buffer_store_dwordx4 v[8:11], v4, s[12:15], 0 offen')
    e.lab(f'{N}_done')
    e('s_endpgm')
    return e.txt(), nwg
```

```python
import sys, os, importlib
sys.path.insert(0, 'scratch'); sys.path.insert(0, 'gen')
k1 = importlib.import_module(os.environ.get('K1MOD', 'k1v8x')).k1
from k2c2 import k2c
from k2gen import kd
stamps = 'iter' if '--iter' in sys.argv else ('--stamps' in sys.argv)
nsets = int(os.environ.get('K2SETS', '4')); wpb = int(os.environ.get('K2WPB', '4'))
out = sys.argv[1]
k2txt, nwg = k2c('afm_out_kernel', nsets, wpb, stamps=bool(stamps))
s = f'''; AFM forward: launch 1 bins the (row, field) items (6 workgroups) and builds the vocabulary pair tables in LDS
; @launch kernel=afm_tab_kernel grid=(256,1,1) block=(512,1,1) lds=163840
; @launch kernel=afm_out_kernel grid=({nwg},1,1) block=({64*wpb},1,1) lds=0
.amdgcn_target "amdgcn-amd-amdhsa--gfx950"
.text
.globl afm_tab_kernel
.globl afm_out_kernel
'''
s += k1('afm_tab_kernel', stamps=stamps)
s += k2txt
s += '.section .rodata,"a"\n.p2align 6\n' + kd('afm_tab_kernel', 256, 102) + '.p2align 6\n' + kd('afm_out_kernel', 64, 48)
open(out, 'w').write(s)
```

```python
import sys, os, importlib
sys.path.insert(0, 'scratch'); sys.path.insert(0, 'gen')
k1 = importlib.import_module(os.environ.get('K1MOD', 'k1v8x')).k1
from k2c2 import k2c
from k2gen import kd
stamps = 'iter' if '--iter' in sys.argv else ('--stamps' in sys.argv)
nsets = int(os.environ.get('K2SETS', '4')); wpb = int(os.environ.get('K2WPB', '4'))
out = sys.argv[1]
k2txt, nwg = k2c('afm_out_kernel', nsets, wpb, stamps=bool(stamps))
s = f'''; AFM forward (B=4096, F=26, D=A=128, V=1000, P=325 pairs) in two launches.
;
; @launch kernel=afm_tab_kernel grid=(256,1,1) block=(512,1,1) lds=163840
; @launch kernel=afm_out_kernel grid=({nwg},1,1) block=({64*wpb},1,1) lds=0
.amdgcn_target "amdgcn-amd-amdhsa--gfx950"
.text
.globl afm_tab_kernel
.globl afm_out_kernel
'''
s += k1('afm_tab_kernel', stamps=stamps)
s += k2txt
s += '.section .rodata,"a"\n.p2align 6\n' + kd('afm_tab_kernel', 256, 102) + '.p2align 6\n' + kd('afm_out_kernel', 64, 48)
open(out, 'w').write(s)
```
